```python
import torch

def _softmax(x, axis=-1):
    return torch.softmax(x, dim=axis)
def _gelu(x):
    return torch.nn.functional.gelu(x, approximate="tanh")
def _silu(x):
    return torch.nn.functional.silu(x)
def _sigmoid(x):
    return torch.sigmoid(x)
def _layernorm(x, axis=-1, eps=1e-5):
    m = x.mean(dim=axis, keepdim=True)
    v = x.var(dim=axis, keepdim=True, unbiased=False)
    return (x - m) / torch.sqrt(v + eps)
def _scatter_add(tgt, idx, src, axis=0):
    return tgt.clone().index_add_(axis, idx, src)
def _segment_sum(src, seg, n):
    out = torch.zeros((n,) + src.shape[1:], dtype=src.dtype)
    return out.index_add_(0, seg, src)
def _pad(x, pw):
    flat = tuple(v for pair in reversed(pw) for v in pair)
    return torch.nn.functional.pad(x, flat)

kernel_name = 'sequential_preLN__mha_block_cached__swiglu_ffn__decode'

def setup_inputs():

    _w = (lambda a: (lambda t: t.to(torch.bfloat16) if t.is_floating_point() else t)(torch.as_tensor(a)))
    def _A_setup():
        B, Sq, D = 2, 1, 512
        H, Sk, Dh = 32, 8192, 128
        return {
            "x": _w((lambda *s: torch.randn(*s, dtype=torch.bfloat16) * 0.05)(B, Sq, D)),
            "k_cache": _w((lambda *s: torch.randn(*s, dtype=torch.bfloat16) * 3.2)(B, H, Sk, Dh)),
            "v_cache": _w((lambda *s: torch.randn(*s, dtype=torch.bfloat16) * 0.4)(B, H, Sk, Dh)),
            "wq": _w((lambda *s: torch.randn(*s, dtype=torch.bfloat16) * 3.2)(D, H * Dh) * (D ** -0.5)),
            "wo": _w((lambda *s: torch.randn(*s, dtype=torch.bfloat16) * 0.4)(H * Dh, D) * ((H * Dh) ** -0.5)),
        }
    _A_in = _A_setup()

    def _B_setup():
        B, S, D, F = 2, 1, 512, 1792
        return {
            "x": _w((lambda *s: torch.randn(*s, dtype=torch.bfloat16) * 0.05)(B, S, D)),
            "w_gate": _w((lambda *s: torch.randn(*s, dtype=torch.bfloat16) * 0.05)(D, F)),
            "w_up": _w((lambda *s: torch.randn(*s, dtype=torch.bfloat16) * 0.05)(D, F)),
            "w_down": _w((lambda *s: torch.randn(*s, dtype=torch.bfloat16) * 0.05)(F, D)),
        }
    _B_in = _B_setup()

    return {
        "A_x": _A_in["x"],
        "A_k_cache": _A_in["k_cache"],
        "A_v_cache": _A_in["v_cache"],
        "A_wq": _A_in["wq"],
        "A_wo": _A_in["wo"],
        "B_x": _B_in["x"],
        "B_w_gate": _B_in["w_gate"],
        "B_w_up": _B_in["w_up"],
        "B_w_down": _B_in["w_down"],
    }

def reference(A_x, A_k_cache, A_v_cache, A_wq, A_wo, B_x, B_w_gate, B_w_up, B_w_down):
    def _A_ref(x, k_cache, v_cache, wq, wo):
        B, Sq, D = x.shape
        H, Dh = 32, 128
        q = (lambda x, *d: x.permute(*d))((x @ wq).reshape(B, Sq, H, Dh), 0, 2, 1, 3)
        scores = torch.einsum("bhqd,bhkd->bhqk", q, k_cache) * (Dh ** -0.5)
        p = _softmax(scores, axis=-1)
        o = torch.einsum("bhqk,bhkd->bhqd", p, v_cache)
        return (lambda x, *d: x.permute(*d))(o, 0, 2, 1, 3).reshape(B, Sq, H * Dh) @ wo

    def _B_ref(x, w_gate, w_up, w_down):
        g = _silu(x @ w_gate)
        u = x @ w_up
        return (g * u) @ w_down

    x = A_x
    h = x + _A_ref(_layernorm(x, axis=-1), A_k_cache, A_v_cache, A_wq, A_wo)
    h2 = h + _B_ref(_layernorm(h, axis=-1), B_w_gate, B_w_up, B_w_down)
    return h2
```

```python
KN = "sequential_preLN__mha_block_cached__swiglu_ffn__decode"
HEADER = """; Kernarg layout for this problem (96 bytes, ptrs only, base s[0:1]):
"""
class Asm:
    def __init__(self):
        self.l = []
    def __call__(self, s=""):
        for x in s.split("\n"):
            x = x.rstrip()
            if x.strip() == "": continue
            if x.strip().endswith(":") or x.strip().startswith(".") or x.strip().startswith(";"):
                self.l.append(x.strip())
            else:
                self.l.append("    " + x.strip())
    def text(self):
        return "\n".join(self.l) + "\n"

def wrap(body, grid, block, lds, vgpr=256, sgpr=102, accum=None, name=None):
    name = name or (KN + "_kernel")
    accum = accum or ((vgpr + 3) // 4 * 4)
    s = HEADER
    s += f"; @launch grid=({grid},1,1) block=({block},1,1) lds={lds}\n"
    s += '.amdgcn_target "amdgcn-amd-amdhsa--gfx950"\n.text\n'
    s += f".globl {name}\n.p2align 8\n.type {name},@function\n{name}:\n"
    s += body
    s += f"""
.section .rodata,"a"
.p2align 6
.amdhsa_kernel {name}
  .amdhsa_next_free_vgpr {vgpr}
  .amdhsa_next_free_sgpr {sgpr}
  .amdhsa_accum_offset {accum}
  .amdhsa_group_segment_fixed_size 0
  .amdhsa_kernarg_size 96
  .amdhsa_user_sgpr_count 2
  .amdhsa_user_sgpr_kernarg_segment_ptr 1
  .amdhsa_system_sgpr_workgroup_id_x 1
.end_amdhsa_kernel
"""
    return s
```

```python
import sys, argparse
from asmlib import *

LOG2E = 0x3fb8aa3b
NAN = 0xffffffff
WS_QX, WS_ML, WS_H, WS_ACT, WS_Y = 0x0, 0x4000, 0x5000, 0x6000, 0x10000
WS_STAMP = 0x10000000
L_QF   = 0
L_MLW  = 256
L_FW   = 320
L_XN   = 512
L_OACC = 2560
L_OB   = 4608
L_DRED = 5632
L_QIMG = 10240
L_WOST = L_QIMG + 16384
L_GIMG = L_WOST + 32768
L_DIMG = L_GIMG + 16384
L_END  = L_DIMG + 57344

class G(Asm):
    def __init__(s, opt):
        super().__init__(); s.o = opt; s.nlab = 0; s.nstamp = 0
    def lab(s, base):
        s.nlab += 1; return f"L_{base}_{s.nlab}"
    def nop(s, n):
        while n > 0:
            k = min(n, 16); s(f"s_nop {k-1}"); n -= k
    def stamp(s, idx):
        if not s.o.stamps: return
        s(f"s_memrealtime s[{64+2*idx}:{65+2*idx}]\ns_waitcnt lgkmcnt(0)")
    def dump_stamps(s, n, slot):
        if not s.o.stamps: return
        l = s.lab("nost")
        s("s_add_u32 s96, s26, 0x10000000\ns_addc_u32 s97, s27, 0")
        s("s_lshl_b32 s98, s2, 3\ns_add_u32 s98, s98, s3\ns_lshl_b32 s98, s98, 7\ns_add_u32 s96, s96, s98\ns_addc_u32 s97, s97, 0")
        s("s_mov_b64 exec, 1\nv_mov_b32 v2, 0")
        for i in range(n):
            s(f"v_mov_b32 v4, s{64+2*i}\nv_mov_b32 v5, s{65+2*i}\nglobal_store_dwordx2 v2, v[4:5], s[96:97] offset:{8*i}")
        s("s_getreg_b32 s98, hwreg(HW_REG_XCC_ID)\nv_mov_b32 v4, s98\nv_mov_b32 v5, 0\nglobal_store_dwordx2 v2, v[4:5], s[96:97] offset:120")
        s("s_mov_b64 exec, -1")

    def row_allreduce(s, op, regs):
        for sh in (8, 4, 2, 1):
            s.nop(2)
            for r in regs: s(f"{op}_dpp v{r}, v{r}, v{r} row_ror:{sh} row_mask:0xf bank_mask:0xf")
    def xrow16(s, op, r, t):
        s(f"v_mov_b32 v{t}, v{r}"); s.nop(2)
        s(f"v_permlane16_swap_b32 v{r}, v{t}"); s.nop(1)
        s(f"{op} v{r}, v{r}, v{t}")
    def xrow32(s, op, r, t):
        s(f"v_mov_b32 v{t}, v{r}"); s.nop(2)
        s(f"v_permlane32_swap_b32 v{r}, v{t}"); s.nop(1)
        s(f"{op} v{r}, v{r}, v{t}")
    def bf16r(s, d, src, t=None):
        s(f"v_cvt_pk_bf16_f32 v{d}, v{src}, v{src}\nv_and_b32 v{d}, 0xffff0000, v{d}")

    def layernorm(s, src, F, T, va, nan_label=None):
        for i in range(8):
            s(f"v_lshlrev_b32 v{F+2*i}, 16, v{src+i}\nv_and_b32 v{F+2*i+1}, 0xffff0000, v{src+i}")
        S = T
        s(f"v_pk_add_f32 v[{T}:{T+1}], v[{F}:{F+1}], v[{F+2}:{F+3}]")
        for i in range(2, 8): s(f"v_pk_add_f32 v[{T}:{T+1}], v[{T}:{T+1}], v[{F+2*i}:{F+2*i+1}]")
        s(f"v_add_f32 v{S}, v{T}, v{T+1}")
        s.row_allreduce("v_add_f32", [S]); s.xrow16("v_add_f32", S, T+1)
        if nan_label:
            s(f"v_cmp_u_f32 vcc, v{S}, v{S}"); s.nop(1); s(f"s_cbranch_vccnz {nan_label}")
        Mn = T+2
        s(f"v_mul_f32 v{Mn}, 0x3b000000, v{S}")
        s(f"v_mov_b32 v{Mn+1}, v{Mn}")
        C = T+4
        s(f"v_mov_b32 v{T}, 0\nv_mov_b32 v{T+1}, 0")
        for i in range(8):
            s(f"v_pk_add_f32 v[{C}:{C+1}], v[{F+2*i}:{F+2*i+1}], v[{Mn}:{Mn+1}] neg_lo:[0,1] neg_hi:[0,1]")
            s(f"v_pk_fma_f32 v[{T}:{T+1}], v[{C}:{C+1}], v[{C}:{C+1}], v[{T}:{T+1}]")
        s(f"v_add_f32 v{S}, v{T}, v{T+1}")
        s.row_allreduce("v_add_f32", [S]); s.xrow16("v_add_f32", S, T+1)
        s(f"v_mul_f32 v{S}, 0x3b000000, v{S}")
        s.bf16r(S, S)
        s(f"v_add_f32 v{S}, 0x3727c5ac, v{S}")
        s.bf16r(S, S)
        s(f"v_sqrt_f32 v{S}, v{S}"); s.nop(1)
        s.bf16r(S, S)
        s(f"v_rcp_f32 v{S}, v{S}")
        s.bf16r(Mn, Mn); s(f"v_mov_b32 v{Mn+1}, v{Mn}\nv_mov_b32 v{S+1}, v{S}")
        for i in range(8):
            s(f"v_pk_add_f32 v[{C}:{C+1}], v[{F+2*i}:{F+2*i+1}], v[{Mn}:{Mn+1}] neg_lo:[0,1] neg_hi:[0,1]")
            s(f"v_cvt_pk_bf16_f32 v{C}, v{C}, v{C+1}")
            s(f"v_and_b32 v{C+1}, 0xffff0000, v{C}\nv_lshlrev_b32 v{C}, 16, v{C}")
            s(f"v_pk_mul_f32 v[{C}:{C+1}], v[{C}:{C+1}], v[{S}:{S+1}]")
            s(f"v_cvt_pk_bf16_f32 v{F+i}, v{C}, v{C+1}")
        s(f"ds_write_b128 v{va}, v[{F}:{F+3}] offset:{L_XN}\nds_write_b128 v{va}, v[{F+4}:{F+7}] offset:{L_XN+16}")

def schedule_stream(g, o):
    R, RING = o.R, 32
    RB = 128
    SB = 64
    Q = 8
    ACC = 12
    MK = 16
    A0 = 20
    a0, x, y = 28, 32, 33
    MX = 34; TMP = 35
    LS = 42; FF = 43; PP = 44
    VOFF = 2
    N = 256
    st = dict(i=0, c=0, arrived=-1)
    cur = {0: None, 1: None}
    def slot(j): return RB + 4 * (j % RING)
    def wait_arrived(j):
        if st['arrived'] >= j: return
        n = st['i'] - 1 - j
        g(f"s_waitcnt vmcnt({n})"); st['arrived'] = j
    def issue():
        j = st['i']
        assert j - 4 * st['c'] < RING, (j, st)
        if j >= R: wait_arrived(j - R)
        kv = 0 if j < 128 else 1
        t = (j % 128) // 4
        if cur[kv] != t:
            g(f"s_mov_b32 s{44+kv}, {t * 16384}"); cur[kv] = t
        srd = "s[36:39]" if kv == 0 else "s[40:43]"
        r = slot(j)
        g(f"buffer_load_dwordx4 v[{r}:{r+3}], v{VOFF}, {srd}, s{44+kv} offen offset:{(j % 4) * 1024} nt")
        st['i'] += 1
    def consume_k(t):
        base = 4 * t
        wait_arrived(base + 3)
        rs = [slot(base + u) for u in range(4)]
        for u in range(4): g(f"v_dot2_f32_bf16 v{a0+u}, v{rs[u]}, v{Q}, 0")
        for k in range(1, 4):
            for u in range(4): g(f"v_dot2c_f32_bf16 v{a0+u}, v{rs[u]+k}, v{Q+k}")
        g.nop(1)
        g(f"v_add_f32_dpp v{x}, v{a0}, v{a0} row_ror:8 row_mask:0xf bank_mask:0x3")
        g(f"v_add_f32_dpp v{x}, v{a0+1}, v{a0+1} row_ror:8 row_mask:0xf bank_mask:0xc")
        g(f"v_add_f32_dpp v{y}, v{a0+2}, v{a0+2} row_ror:8 row_mask:0xf bank_mask:0x3")
        g(f"v_add_f32_dpp v{y}, v{a0+3}, v{a0+3} row_ror:8 row_mask:0xf bank_mask:0xc")
        g.nop(1)
        S = SB + t
        g(f"v_add_f32_dpp v{S}, v{x}, v{x} row_shl:4 row_mask:0xf bank_mask:0x5")
        g(f"v_add_f32_dpp v{S}, v{y}, v{y} row_shr:4 row_mask:0xf bank_mask:0xa")
        g.nop(2)
        g(f"v_add_f32_dpp v{S}, v{S}, v{S} quad_perm:[1,0,3,2] row_mask:0xf bank_mask:0xf")
        g.nop(2)
        g(f"v_add_f32_dpp v{S}, v{S}, v{S} quad_perm:[2,3,0,1] row_mask:0xf bank_mask:0xf")
        if o.mimic:
            g.bf16r(S, S)
            g(f"v_mul_f32 v{S}, 0x3db504f3, v{S}")
            g.bf16r(S, S)
        else:
            g(f"v_mul_f32 v{S}, 0x3db504f3, v{S}")
        g(f"v_max_f32 v{MX}, v{MX}, v{S}")
        st['c'] += 1
    def consume_v(t):
        base = 128 + 4 * t
        S = SB + t
        g(f"v_mul_f32 v{PP}, v{S}, v{FF}")
        g(f"v_cvt_pk_bf16_f32 v{PP}, v{PP}, v{PP}")
        wait_arrived(base + 3)
        g.nop(2)
        bank = [0, 2, 1, 3]
        for u in range(4):
            A = A0 + 4 * (u & 1)
            for r in range(4): g(f"v_and_b32_dpp v{A+r}, v{PP}, v{MK+r} row_newbcast:{4*bank[u]} row_mask:0xf bank_mask:0xf")
            g.nop(2)
            rv = slot(base + u)
            g(f"v_mfma_f32_16x16x32_bf16 v[{ACC}:{ACC+3}], v[{A}:{A+3}], v[{rv}:{rv+3}], v[{ACC}:{ACC+3}]")
        st['c'] += 1

    g("s_lshl_b32 s32, s30, 5\ns_add_u32 s32, s32, s28\ns_lshl_b32 s32, s32, 21\ns_lshl_b32 s33, s31, 19\ns_add_u32 s32, s32, s33")
    g("s_add_u32 s36, s6, s32\ns_addc_u32 s37, s7, 0\ns_and_b32 s37, s37, 0xffff\ns_mov_b32 s38, 0x80000\ns_mov_b32 s39, 0x20000")
    g("s_add_u32 s40, s8, s32\ns_addc_u32 s41, s9, 0\ns_and_b32 s41, s41, 0xffff\ns_mov_b32 s42, 0x80000\ns_mov_b32 s43, 0x20000")
    g(f"s_lshl_b32 s33, s3, 12\nv_lshlrev_b32 v{VOFF}, 4, v1\nv_add_u32 v{VOFF}, s33, v{VOFF}")
    g.stamp(0)
    for _ in range(R): issue()
    g(f"v_and_b32 v{TMP}, 15, v1")
    for r in range(4):
        g(f"v_lshrrev_b32 v{TMP+1}, 1, v{TMP}\nv_cmp_eq_u32 vcc, {r}, v{TMP+1}\nv_and_b32 v{TMP+2}, 1, v{TMP}\nv_cmp_eq_u32 s[46:47], 1, v{TMP+2}")
        g(f"v_mov_b32 v{TMP+3}, 0xffff\nv_mov_b32 v{TMP+4}, 0xffff0000\nv_cndmask_b32 v{TMP+3}, v{TMP+3}, v{TMP+4}, s[46:47]\nv_cndmask_b32 v{MK+r}, 0, v{TMP+3}, vcc")
    for r in range(4): g(f"v_mov_b32 v{ACC+r}, 0")
    g(f"v_mov_b32 v{MX}, 0xff800000")
    while st['i'] < RING: issue()
    g.stamp(1)
    g("s_barrier")
    g.stamp(2)
    g(f"v_lshlrev_b32 v{TMP}, 4, v{TMP}\nds_read_b128 v[{Q}:{Q+3}], v{TMP} offset:{L_QF}\ns_waitcnt lgkmcnt(0)")
    GAP = R + 3
    while st['c'] < 32:
        consume_k(st['c'])
        gap = st['i'] - 4 * st['c']
        n = 1 if gap > GAP else 4
        if st['c'] == 32: break
        for _ in range(n):
            if st['i'] - 4 * st['c'] < RING and st['i'] < N: issue()
    g.stamp(3)
    g.row_allreduce("v_max_f32", [MX]); g.xrow16("v_max_f32", MX, TMP); g.xrow32("v_max_f32", MX, TMP)
    issue()
    MC = TMP + 1
    g(f"v_mul_f32 v{MC}, {hex(LOG2E)}, v{MX}\nv_mov_b32 v{TMP+2}, {hex(LOG2E)}\nv_mov_b32 v{LS}, 0")
    for t in range(32):
        S = SB + t
        g(f"v_fma_f32 v{S}, v{S}, v{TMP+2}, -v{MC}\nv_exp_f32 v{S}, v{S}")
        if t > 0: g(f"v_add_f32 v{LS}, v{LS}, v{SB+t-1}")
        if t % 8 == 7: issue()
    g.nop(1); g(f"v_add_f32 v{LS}, v{LS}, v{SB+31}")
    g.row_allreduce("v_add_f32", [LS]); g.xrow16("v_add_f32", LS, TMP); g.xrow32("v_add_f32", LS, TMP)
    g(f"v_mul_f32 v{LS}, 0x3e800000, v{LS}")
    g(f"v_mov_b32 v{TMP+4}, v{MX}\nv_mov_b32 v{TMP+5}, v{LS}")
    assert (TMP + 4) % 2 == 1 or True
    P2 = 46
    g(f"v_mov_b32 v{P2}, v{MX}\nv_mov_b32 v{P2+1}, v{LS}")
    g(f"s_lshl_b32 s33, s3, 3\nv_mov_b32 v{TMP}, s33\ns_mov_b64 exec, 1\nds_write_b64 v{TMP}, v[{P2}:{P2+1}] offset:{L_MLW}\ns_mov_b64 exec, -1")
    g.stamp(4)
    while st['i'] - 4 * st['c'] < RING: issue()
    g.stamp(5)
    l = g.lab("fspin"); lo = g.lab("fok")
    g(f"s_lshl_b32 s33, s3, 2\nv_mov_b32 v{TMP}, s33\ns_mov_b32 s48, 0")
    g(f"{l}:\nds_read_b32 v{FF}, v{TMP} offset:{L_FW}\ns_waitcnt lgkmcnt(0)\nv_cmp_u_f32 vcc, v{FF}, v{FF}")
    g(f"s_add_u32 s48, s48, 1\ns_cmp_gt_u32 s48, {o.spin * 20}\ns_cbranch_scc1 L_end\ns_cbranch_vccnz {l}")
    g.stamp(6)
    while st['c'] < 64:
        consume_v(st['c'] - 32)
        gap = st['i'] - 4 * st['c']
        n = 1 if gap > GAP else 4
        for _ in range(n):
            if st['i'] - 4 * st['c'] < RING and st['i'] < N: issue()
    g.stamp(7)
    g(f"v_and_b32 v{TMP}, 15, v1\nv_lshlrev_b32 v{TMP}, 5, v{TMP}\nv_lshrrev_b32 v{TMP+1}, 4, v1\nv_lshlrev_b32 v{TMP+1}, 4, v{TMP+1}\nv_add_u32 v{TMP}, v{TMP}, v{TMP+1}")
    g(f"s_lshl_b32 s33, s3, 9\nv_add_u32 v{TMP}, s33, v{TMP}")
    g.nop(8)
    g(f"s_mov_b32 exec_hi, 0\nds_write_b128 v{TMP}, v[{ACC}:{ACC+3}] offset:{L_OACC}\ns_waitcnt lgkmcnt(0)\ns_mov_b32 exec_hi, -1")
    g("s_barrier")
    g.stamp(8)
    g.dump_stamps(9, 0)
    g("s_endpgm")

def gemv16(g, Areg, Breg, nkb, D, first=True):
    pass

def tail(g, o):
    LN_ = 1
    g("L_tail:")
    g("s_sub_u32 s34, s3, 4")
    g.stamp(0)
    g("s_cmp_eq_u32 s34, 0\ns_cbranch_scc0 L_tail_b1")
    g("v_lshrrev_b32 v2, 5, v1\nv_lshlrev_b32 v2, 10, v2\nv_and_b32 v3, 31, v1\nv_lshlrev_b32 v3, 5, v3\nv_add_u32 v2, v2, v3")
    g("global_load_dwordx4 v[8:11], v2, s[4:5]\nglobal_load_dwordx4 v[12:15], v2, s[4:5] offset:16")
    g("s_mov_b32 s48, s10\ns_and_b32 s49, s11, 0xffff\ns_mov_b32 s50, 0x400000\ns_mov_b32 s51, 0x20000")
    g("s_lshl_b32 s52, s28, 8\ns_lshl_b32 s53, s29, 5\ns_add_u32 s52, s52, s53")
    g("v_lshrrev_b32 v4, 1, v1\nv_lshlrev_b32 v4, 13, v4\nv_and_b32 v5, 1, v1\nv_lshlrev_b32 v5, 4, v5\nv_add_u32 v4, v4, v5\nv_add_u32 v4, s52, v4")
    for t in range(16):
        g(f"s_mov_b32 m0, {L_QIMG + t*1024}\ns_mov_b32 s54, {t * 32 * 8192}")
        g(f"buffer_load_dwordx4 v4, s[48:51], s54 offen lds")
    g("s_waitcnt vmcnt(16)")
    g.stamp(1)
    g.layernorm(8, 16, 32, 2)
    g("v_lshrrev_b32 v5, 4, v1\nv_lshlrev_b32 v5, 3, v5\nv_bfe_u32 v6, v1, 2, 2\nv_add_u32 v5, v5, v6\nv_lshlrev_b32 v5, 5, v5\nv_and_b32 v6, 3, v1\nv_lshlrev_b32 v6, 3, v6\nv_add_u32 v5, v5, v6")
    g("v_and_b32 v6, 1, v1\nv_lshlrev_b32 v6, 10, v6\nv_lshrrev_b32 v7, 4, v1\nv_lshlrev_b32 v7, 4, v7\nv_add_u32 v6, v6, v7")
    g("s_waitcnt lgkmcnt(0)")
    for kb in range(16): g(f"ds_read_b128 v[{192+4*kb}:{195+4*kb}], v6 offset:{L_XN + kb*64}")
    g("s_waitcnt vmcnt(0)")
    g.stamp(2)
    g(f"s_add_u32 s56, s26, {WS_Y}\ns_addc_u32 s57, s27, 0")
    g("v_mov_b32 v40, -1\nv_mov_b32 v41, -1\nv_mov_b32 v42, -1\nv_mov_b32 v43, -1")
    g("s_lshl_b32 s52, s30, 18\ns_lshl_b32 s53, s28, 2\ns_add_u32 s53, s53, s31\ns_lshl_b32 s53, s53, 6\ns_add_u32 s52, s52, s53")
    g("v_lshrrev_b32 v44, 2, v1\nv_lshlrev_b32 v44, 13, v44\nv_and_b32 v45, 3, v1\nv_lshlrev_b32 v45, 4, v45\nv_add_u32 v44, v44, v45\nv_add_u32 v44, s52, v44")
    g("global_store_dwordx4 v44, v[40:43], s[56:57] sc1\nv_add_u32 v45, 0x20000, v44\nglobal_store_dwordx4 v45, v[40:43], s[56:57] sc1")
    g("s_lshl_b32 s52, s30, 5\ns_add_u32 s52, s52, s28\ns_lshl_b32 s52, s52, 2\ns_add_u32 s52, s52, s31\ns_lshl_b32 s52, s52, 3")
    g(f"s_add_u32 s52, s52, {WS_ML}\nv_mov_b32 v46, s52\ns_mov_b64 exec, 1\nglobal_store_dwordx2 v46, v[40:41], s[26:27] sc1")
    l1 = g.lab("noh")
    g(f"s_cmp_lt_u32 s2, 64\ns_cbranch_scc0 {l1}")
    g(f"s_lshl_b32 s52, s2, 5\ns_add_u32 s52, s52, {WS_H}\nv_mov_b32 v46, s52\nglobal_store_dwordx4 v46, v[40:43], s[26:27] sc1\nglobal_store_dwordx4 v46, v[40:43], s[26:27] offset:16 sc1")
    g(f"{l1}:")
    l1 = g.lab("noact")
    g(f"s_cmp_lt_u32 s2, 224\ns_cbranch_scc0 {l1}")
    g(f"s_and_b32 s52, s2, 7\ns_mul_i32 s52, s52, 28\ns_lshr_b32 s53, s2, 3\ns_add_u32 s52, s52, s53\ns_lshl_b32 s52, s52, 4\ns_add_u32 s52, s52, {WS_ACT}")
    g("v_mov_b32 v46, s52\nglobal_store_dwordx4 v46, v[40:43], s[26:27] sc1\nglobal_store_dwordx4 v46, v[40:43], s[26:27] offset:3584 sc1")
    g(f"{l1}:\ns_mov_b64 exec, -1")
    for kb in range(16):
        g(f"ds_read_b64_tr_b16 v[{128+4*kb}:{129+4*kb}], v5 offset:{L_QIMG + kb*1024}")
        g(f"ds_read_b64_tr_b16 v[{130+4*kb}:{131+4*kb}], v5 offset:{L_QIMG + kb*1024 + 128}")
        if kb % 4 == 3: g("s_waitcnt lgkmcnt(0)")
    g("v_mov_b32 v48, 0\nv_mov_b32 v49, 0\nv_mov_b32 v50, 0\nv_mov_b32 v51, 0")
    g.nop(2)
    for kb in range(16):
        g(f"v_mfma_f32_16x16x32_bf16 v[48:51], v[{128+4*kb}:{131+4*kb}], v[{192+4*kb}:{195+4*kb}], v[48:51]")
    g.nop(8)
    g("v_cvt_pk_bf16_f32 v52, v48, v49\nv_cvt_pk_bf16_f32 v53, v50, v51")
    g("s_lshl_b32 s52, s28, 8\ns_lshl_b32 s53, s29, 5\ns_add_u32 s52, s52, s53")
    g("v_and_b32 v54, 15, v1\nv_cmp_gt_u32 vcc, 2, v54\nv_lshlrev_b32 v54, 13, v54\nv_lshrrev_b32 v55, 4, v1\nv_lshlrev_b32 v55, 3, v55\nv_add_u32 v54, v54, v55\nv_add_u32 v54, s52, v54")
    g("s_and_saveexec_b64 s[58:59], vcc\nglobal_store_dwordx2 v54, v[52:53], s[26:27] sc1\ns_mov_b64 exec, s[58:59]")
    g("s_waitcnt vmcnt(0)")
    g.stamp(3)
    g("s_lshl_b32 s52, s28, 3\ns_add_u32 s53, s52, s29\nv_mov_b32 v54, s53\nv_mov_b32 v55, 1\ns_mov_b64 exec, 1\nglobal_store_byte v54, v55, s[24:25] sc1\ns_mov_b64 exec, -1")
    l = g.lab("qpoll")
    g(f"v_mov_b32 v54, s52\ns_mov_b32 s60, 0\n{l}:\nglobal_load_dwordx2 v[56:57], v54, s[24:25] sc1\ns_waitcnt vmcnt(0)")
    g("v_and_b32 v56, v56, v57\nv_cmp_ne_u32 vcc, 0x01010101, v56")
    g(f"s_add_u32 s60, s60, 1\ns_cmp_gt_u32 s60, {o.spin}\ns_cbranch_scc1 L_end\ns_cbranch_vccnz {l}")
    g.stamp(4)
    g(f"s_lshl_b32 s52, s30, 13\ns_lshl_b32 s53, s28, 8\ns_add_u32 s52, s52, s53\nv_and_b32 v54, 15, v1\nv_lshlrev_b32 v54, 4, v54\nv_add_u32 v55, s52, v54")
    g(f"global_load_dwordx4 v[56:59], v55, s[26:27] sc1\ns_waitcnt vmcnt(0)\nds_write_b128 v54, v[56:59] offset:{L_QF}\ns_waitcnt lgkmcnt(0)")
    g.stamp(5)
    g("s_branch L_tail_bar1")
    g("L_tail_b1:")
    g(f"v_mov_b32 v2, -1\nv_lshlrev_b32 v3, 2, v1\ns_mov_b64 exec, 0xfffff\nds_write_b32 v3, v2 offset:{L_MLW}\ns_mov_b64 exec, -1\ns_waitcnt lgkmcnt(0)")
    g("L_tail_bar1:")
    g("s_barrier")
    g.stamp(6)
    g("s_mov_b32 s48, s12\ns_and_b32 s49, s13, 0xffff\ns_mov_b32 s50, 0x400000\ns_mov_b32 s51, 0x20000")
    g("s_lshl_b32 s52, s28, 17\ns_lshl_b32 s53, s34, 8\ns_add_u32 s52, s52, s53")
    g("v_lshrrev_b32 v4, 4, v1\nv_lshlrev_b32 v4, 10, v4\nv_and_b32 v5, 15, v1\nv_lshlrev_b32 v5, 4, v5\nv_add_u32 v4, v4, v5\nv_add_u32 v4, s52, v4")
    g(f"s_lshl_b32 s55, s34, 13\ns_add_u32 s55, s55, {L_WOST}")
    g("v_lshrrev_b32 v5, 4, v1\nv_lshlrev_b32 v5, 3, v5\nv_bfe_u32 v6, v1, 2, 2\nv_add_u32 v5, v5, v6\nv_lshlrev_b32 v5, 8, v5\nv_and_b32 v6, 3, v1\nv_lshlrev_b32 v6, 3, v6\nv_add_u32 v5, v5, v6\nv_add_u32 v5, s55, v5")
    for kb in range(4):
        for t in range(8):
            g(f"s_add_u32 m0, s55, {t*1024}\ns_mov_b32 s54, {(32*kb + 4*t) * 1024}")
            g("buffer_load_dwordx4 v4, s[48:51], s54 offen lds")
        g("s_waitcnt vmcnt(0)")
        for cb in range(8):
            r = 128 + (kb * 8 + cb) * 4
            g(f"ds_read_b64_tr_b16 v[{r}:{r+1}], v5 offset:{cb*32}\nds_read_b64_tr_b16 v[{r+2}:{r+3}], v5 offset:{cb*32+1024}")
            if cb % 4 == 3: g("s_waitcnt lgkmcnt(0)")
    g.stamp(7)
    ld = g.lab("dimg"); le = g.lab("imgdone")
    g(f"s_cmp_lt_u32 s2, 224\ns_cbranch_scc0 {ld}")
    g("s_and_b32 s61, s2, 7\ns_mul_i32 s61, s61, 28\ns_lshr_b32 s53, s2, 3\ns_add_u32 s61, s61, s53")
    g("s_movk_i32 s53, 3584\nv_mul_lo_u32 v6, v1, s53\ns_lshl_b32 s52, s61, 4\ns_mul_i32 s62, s34, 128*3584\ns_add_u32 s52, s52, s62\nv_add_u32 v6, s52, v6")
    for m, (lo, hi) in enumerate((("s16", "s17"), ("s18", "s19"))):
        g(f"s_mov_b32 s48, {lo}\ns_and_b32 s49, {hi}, 0xffff\ns_mov_b32 s50, {512*3584}\ns_mov_b32 s51, 0x20000")
        for n in range(2):
            g(f"s_lshl_b32 s53, s34, 11\ns_add_u32 m0, s53, {L_GIMG + m*8192 + n*1024}\ns_mov_b32 s54, {n*64*3584}")
            g("buffer_load_dwordx4 v6, s[48:51], s54 offen lds")
    g(f"s_branch {le}")
    g(f"{ld}:")
    g("s_and_b32 s61, s2, 7\ns_lshl_b32 s61, s61, 2\ns_lshr_b32 s53, s2, 3\ns_sub_u32 s53, s53, 28\ns_add_u32 s61, s61, s53")
    g(f"s_mov_b32 s48, s20\ns_and_b32 s49, s21, 0xffff\ns_mov_b32 s50, {1792*1024}\ns_mov_b32 s51, 0x20000")
    g("v_lshrrev_b32 v6, 1, v1\nv_lshlrev_b32 v6, 10, v6\nv_and_b32 v7, 1, v1\nv_lshlrev_b32 v7, 4, v7\nv_add_u32 v6, v6, v7")
    g("s_lshl_b32 s52, s61, 5\ns_mul_i32 s62, s34, 448*1024\ns_add_u32 s52, s52, s62\nv_add_u32 v6, s52, v6")
    g(f"s_mul_i32 s62, s34, 14336\ns_add_u32 s62, s62, {L_DIMG}")
    for t in range(14):
        g(f"s_add_u32 m0, s62, {t*1024}\ns_mov_b32 s54, {t*32*1024}")
        g("buffer_load_dwordx4 v6, s[48:51], s54 offen lds")
    g(f"{le}:\ns_waitcnt vmcnt(0)")
    g.stamp(8)
    lw = g.lab("now5")
    g(f"s_cmp_eq_u32 s34, 1\ns_cbranch_scc0 {lw}")
    l = g.lab("fall")
    g(f"v_lshlrev_b32 v8, 2, v1\ns_mov_b32 s60, 0\n{l}:\nglobal_load_dword v9, v8, s[24:25] sc1\ns_waitcnt vmcnt(0)\nv_cmp_ne_u32 vcc, 0x01010101, v9")
    g(f"s_add_u32 s60, s60, 1\ns_cmp_gt_u32 s60, {o.spin}\ns_cbranch_scc1 L_end\ns_cbranch_vccnz {l}")
    g("s_lshl_b32 s52, s2, 5\ns_and_b32 s52, s52, 0x7ff\nv_and_b32 v8, 3, v1\nv_lshlrev_b32 v8, 3, v8\nv_add_u32 v8, s52, v8\nglobal_load_dwordx2 v[64:65], v8, s[4:5]")
    l = g.lab("mlw")
    g(f"v_and_b32 v8, 3, v1\nv_lshlrev_b32 v9, 3, v8\ns_mov_b32 s60, 0\n{l}:\nds_read_b64 v[10:11], v9 offset:{L_MLW}\ns_waitcnt lgkmcnt(0)\nv_cmp_u_f32 vcc, v10, v11")
    g(f"s_add_u32 s60, s60, 1\ns_cmp_gt_u32 s60, {o.spin * 20}\ns_cbranch_scc1 L_end\ns_cbranch_vccz {l}_ok\ns_sleep 8\ns_branch {l}\n{l}_ok:")
    g.stamp(9)
    g("v_mov_b32 v12, v10"); g.nop(2)
    g("v_max_f32_dpp v12, v12, v12 quad_perm:[1,0,3,2] row_mask:0xf bank_mask:0xf"); g.nop(2)
    g("v_max_f32_dpp v12, v12, v12 quad_perm:[2,3,0,1] row_mask:0xf bank_mask:0xf")
    g(f"v_sub_f32 v13, v10, v12\nv_mul_f32 v13, {hex(LOG2E)}, v13\nv_exp_f32 v13, v13"); g.nop(1)
    g("v_mul_f32 v13, v13, v11"); g.nop(2)
    g("v_add_f32_dpp v13, v13, v13 quad_perm:[1,0,3,2] row_mask:0xf bank_mask:0xf"); g.nop(2)
    g("v_add_f32_dpp v13, v13, v13 quad_perm:[2,3,0,1] row_mask:0xf bank_mask:0xf")
    g("s_lshl_b32 s52, s30, 5\ns_add_u32 s52, s52, s28\ns_lshl_b32 s52, s52, 5")
    g(f"s_add_u32 s52, s52, {WS_ML}\ns_lshl_b32 s53, s31, 3\ns_add_u32 s53, s53, s52\nv_mov_b32 v14, s53\ns_mov_b64 exec, 1\nglobal_store_dwordx2 v14, v[12:13], s[26:27] sc1\ns_mov_b64 exec, -1")
    l = g.lab("mlg")
    g(f"v_lshlrev_b32 v14, 3, v8\nv_add_u32 v14, s52, v14\ns_mov_b32 s60, 0\n{l}:\nglobal_load_dwordx2 v[16:17], v14, s[26:27] sc1\ns_waitcnt vmcnt(0)\nv_cmp_u_f32 vcc, v16, v17")
    g(f"s_add_u32 s60, s60, 1\ns_cmp_gt_u32 s60, {o.spin}\ns_cbranch_scc1 L_end\ns_cbranch_vccnz {l}")
    g("v_mov_b32 v18, v16"); g.nop(2)
    g("v_max_f32_dpp v18, v18, v18 quad_perm:[1,0,3,2] row_mask:0xf bank_mask:0xf"); g.nop(2)
    g("v_max_f32_dpp v18, v18, v18 quad_perm:[2,3,0,1] row_mask:0xf bank_mask:0xf")
    g(f"v_sub_f32 v19, v16, v18\nv_mul_f32 v19, {hex(LOG2E)}, v19\nv_exp_f32 v19, v19"); g.nop(1)
    g("v_mul_f32 v19, v19, v17"); g.nop(2)
    g("v_add_f32_dpp v19, v19, v19 quad_perm:[1,0,3,2] row_mask:0xf bank_mask:0xf"); g.nop(2)
    g("v_add_f32_dpp v19, v19, v19 quad_perm:[2,3,0,1] row_mask:0xf bank_mask:0xf")
    g(f"v_rcp_f32 v19, v19\nv_sub_f32 v10, v10, v18\nv_mul_f32 v10, {hex(LOG2E)}, v10\nv_exp_f32 v10, v10"); g.nop(1)
    g(f"v_mul_f32 v10, v10, v19\nv_lshlrev_b32 v9, 2, v8\ns_mov_b64 exec, 0xf\nds_write_b32 v9, v10 offset:{L_FW}\ns_mov_b64 exec, -1\ns_waitcnt lgkmcnt(0)")
    g.stamp(10)
    g(f"{lw}:")
    g(f"v_lshlrev_b32 v2, 3, v1\ns_lshl_b32 s52, s34, 8\nv_lshlrev_b32 v3, 2, v1\nv_add_u32 v3, s52, v3\nv_lshrrev_b32 v4, 4, v1\nv_lshlrev_b32 v4, 4, v4\nv_add_u32 v4, s52, v4")
    g("s_lshl_b32 s52, s30, 5\ns_lshl_b32 s53, s34, 3\ns_add_u32 s52, s52, s53\ns_lshl_b32 s52, s52, 13\ns_lshl_b32 s53, s28, 2\ns_add_u32 s53, s53, s31\ns_lshl_b32 s53, s53, 6\ns_add_u32 s52, s52, s53")
    g(f"v_lshrrev_b32 v5, 4, v1\nv_lshlrev_b32 v5, 4, v5\nv_add_u32 v5, s52, v5")
    g(f"s_add_u32 s56, s26, {WS_Y}\ns_addc_u32 s57, s27, 0")
    for cb in range(8):
        for r in range(4): g(f"v_mov_b32 v{32 + cb*4 + r}, 0")
    g("s_waitcnt vmcnt(0)")
    g("s_barrier")
    g.stamp(11)
    for w in range(4): g(f"ds_read_b64 v[{8+2*w}:{9+2*w}], v2 offset:{L_OACC + w*512}")
    g("s_waitcnt lgkmcnt(0)")
    g("v_pk_add_f32 v[8:9], v[8:9], v[10:11]\nv_pk_add_f32 v[12:13], v[12:13], v[14:15]\nv_pk_add_f32 v[8:9], v[8:9], v[12:13]")
    g(f"v_cvt_pk_bf16_f32 v8, v8, v9\nds_write_b32 v3, v8 offset:{L_OB}\ns_waitcnt lgkmcnt(0)")
    for kb in range(4): g(f"ds_read_b128 v[{16+4*kb}:{19+4*kb}], v4 offset:{L_OB + kb*64}")
    for kb in range(4):
        g(f"s_waitcnt lgkmcnt({3-kb})")
        for cb in range(8):
            r = 128 + (kb * 8 + cb) * 4
            g(f"v_mfma_f32_16x16x32_bf16 v[{32+cb*4}:{35+cb*4}], v[{r}:{r+3}], v[{16+4*kb}:{19+4*kb}], v[{32+cb*4}:{35+cb*4}]")
    g("s_mov_b32 exec_lo, 0x00010001\ns_mov_b32 exec_hi, 0x00010001")
    for cb in range(8):
        if cb == 0: g.nop(2)
        g(f"v_add_u32 v6, {cb*8192}, v5") if cb else g("v_mov_b32 v6, v5")
        if cb == 0: g.nop(6)
        g(f"global_store_dwordx4 v6, v[{32+cb*4}:{35+cb*4}], s[56:57] sc1")
    g("s_mov_b64 exec, -1")
    g.stamp(12)
    g("s_cmp_lt_u32 s2, 224\ns_cbranch_scc0 L_dstage")
    g("s_cmp_eq_u32 s34, 0\ns_cbranch_scc1 L_gstage")
    g("s_cmp_eq_u32 s34, 1\ns_cbranch_scc0 L_fin")
    g("s_cmp_lt_u32 s2, 64\ns_cbranch_scc0 L_fin")
    g(f"s_lshl_b32 s52, s2, 13\nv_lshlrev_b32 v2, 4, v1\nv_add_u32 v2, s52, v2\ns_mov_b32 s60, 0")
    l = g.lab("rpoll")
    g(f"{l}:")
    for t in range(8):
        g(f"global_load_dwordx4 v[{32+4*t}:{35+4*t}], v2, s[56:57] offset:{(t*1024) if t < 4 else 0} sc1" if t < 4 else
          f"global_load_dwordx4 v[{32+4*t}:{35+4*t}], v3, s[56:57] offset:{(t-4)*1024} sc1")
        if t == 3: g("v_add_u32 v3, 4096, v2")
    g("s_waitcnt vmcnt(0)")
    for t in range(1, 8):
        g(f"v_pk_add_f32 v[32:33], v[32:33], v[{32+4*t}:{33+4*t}]\nv_pk_add_f32 v[34:35], v[34:35], v[{34+4*t}:{35+4*t}]")
    for sh in (4, 8):
        g.nop(2)
        for r in range(4): g(f"v_add_f32_dpp v{32+r}, v{32+r}, v{32+r} row_ror:{sh} row_mask:0xf bank_mask:0xf")
    for r in range(4): g(f"v_mov_b32 v{36+r}, v{32+r}")
    g.nop(2)
    for r in range(4): g(f"v_permlane16_swap_b32 v{32+r}, v{36+r}")
    g.nop(1)
    for r in range(4): g(f"v_add_f32 v{32+r}, v{32+r}, v{36+r}")
    for r in range(4): g(f"v_mov_b32 v{36+r}, v{32+r}")
    g.nop(2)
    for r in range(4): g(f"v_permlane32_swap_b32 v{32+r}, v{36+r}")
    g.nop(1)
    for r in range(4): g(f"v_add_f32 v{32+r}, v{32+r}, v{36+r}")
    g("v_add_f32 v36, v32, v33\nv_add_f32 v37, v34, v35\nv_add_f32 v36, v36, v37\nv_cmp_u_f32 vcc, v36, v36")
    g(f"s_add_u32 s60, s60, 1\ns_cmp_gt_u32 s60, {o.spin}\ns_cbranch_scc1 L_end\ns_cbranch_vccnz {l}")
    g.stamp(13)
    g("v_cvt_pk_bf16_f32 v36, v32, v33\nv_cvt_pk_bf16_f32 v37, v34, v35")
    g("v_lshlrev_b32 v32, 16, v36\nv_and_b32 v33, 0xffff0000, v36\nv_lshlrev_b32 v34, 16, v37\nv_and_b32 v35, 0xffff0000, v37")
    g("v_lshlrev_b32 v38, 16, v64\nv_and_b32 v39, 0xffff0000, v64\nv_lshlrev_b32 v40, 16, v65\nv_and_b32 v41, 0xffff0000, v65")
    g("v_pk_add_f32 v[32:33], v[32:33], v[38:39]\nv_pk_add_f32 v[34:35], v[34:35], v[40:41]")
    g("v_cvt_pk_bf16_f32 v36, v32, v33\nv_cvt_pk_bf16_f32 v37, v34, v35")
    g(f"s_lshl_b32 s52, s2, 5\ns_add_u32 s52, s52, {WS_H}\nv_and_b32 v8, 3, v1\nv_lshlrev_b32 v8, 3, v8\nv_add_u32 v8, s52, v8")
    g("s_mov_b64 exec, 0xf\nglobal_store_dwordx2 v8, v[36:37], s[26:27] sc1\ns_mov_b64 exec, -1")
    g.stamp(14)
    g("s_branch L_fin")
    g("L_gstage:")
    g("v_lshrrev_b32 v5, 4, v1\nv_lshlrev_b32 v5, 3, v5\nv_bfe_u32 v6, v1, 2, 2\nv_add_u32 v5, v5, v6\nv_lshlrev_b32 v5, 4, v5")
    g("v_and_b32 v6, 1, v1\nv_lshlrev_b32 v6, 3, v6\nv_add_u32 v5, v5, v6\nv_bfe_u32 v6, v1, 1, 1\nv_lshlrev_b32 v6, 13, v6\nv_add_u32 v5, v5, v6")
    g(f"v_add_u32 v5, {L_GIMG}, v5")
    for kb in range(16):
        g(f"ds_read_b64_tr_b16 v[{128+4*kb}:{129+4*kb}], v5 offset:{kb*512}")
        g(f"ds_read_b64_tr_b16 v[{130+4*kb}:{131+4*kb}], v5 offset:{kb*512 + 64}")
        if kb % 4 == 3: g("s_waitcnt lgkmcnt(0)")
    g("v_lshrrev_b32 v2, 5, v1\nv_lshlrev_b32 v2, 10, v2\nv_and_b32 v3, 31, v1\nv_lshlrev_b32 v3, 5, v3\nv_add_u32 v2, v2, v3")
    g(f"v_add_u32 v3, {WS_H}, v2")
    g("v_and_b32 v6, 1, v1\nv_lshlrev_b32 v6, 10, v6\nv_lshrrev_b32 v7, 4, v1\nv_lshlrev_b32 v7, 4, v7\nv_add_u32 v6, v6, v7")
    g("s_and_b32 s61, s2, 7\ns_mul_i32 s61, s61, 28\ns_lshr_b32 s53, s2, 3\ns_add_u32 s61, s61, s53\ns_lshl_b32 s61, s61, 4")
    g(f"s_add_u32 s61, s61, {WS_ACT}\nv_and_b32 v7, 1, v1\nv_mul_u32_u24 v7, 3584, v7\nv_lshrrev_b32 v60, 4, v1\nv_lshlrev_b32 v60, 3, v60\nv_add_u32 v7, v7, v60\nv_add_u32 v7, s61, v7")
    g("v_mov_b32 v48, 0\nv_mov_b32 v49, 0\nv_mov_b32 v50, 0\nv_mov_b32 v51, 0\ns_mov_b32 s60, 0")
    l = g.lab("hpoll")
    g(f"{l}:")
    g(f"s_add_u32 s60, s60, 1\ns_cmp_gt_u32 s60, {o.spin}\ns_cbranch_scc1 L_end")
    g("global_load_dwordx4 v[8:11], v3, s[26:27] sc1\nglobal_load_dwordx4 v[12:15], v3, s[26:27] offset:16 sc1\ns_waitcnt vmcnt(0)")
    if o.stamps: g.stamp(13)
    g("v_max3_u32 v60, v8, v9, v10\nv_max3_u32 v60, v60, v11, v12\nv_max3_u32 v60, v60, v13, v14\nv_max_u32 v60, v60, v15\nv_cmp_eq_u32 vcc, -1, v60")
    g.nop(1); g(f"s_cbranch_vccnz {l}")
    g.layernorm(8, 16, 32, 2)
    g("s_waitcnt lgkmcnt(0)")
    for kb in range(16): g(f"ds_read_b128 v[{192+4*kb}:{195+4*kb}], v6 offset:{L_XN + kb*64}")
    for kb in range(16):
        g(f"s_waitcnt lgkmcnt({15-kb})")
        g(f"v_mfma_f32_16x16x32_bf16 v[48:51], v[{128+4*kb}:{131+4*kb}], v[{192+4*kb}:{195+4*kb}], v[48:51]")
    g.nop(8)
    for r in range(4): g(f"v_mov_b32 v{52+r}, v{48+r}")
    g.nop(2)
    for r in range(4): g(f"v_permlane32_swap_b32 v{48+r}, v{52+r}")
    g.nop(1)
    for r in range(4):
        g.bf16r(48+r, 48+r); g.bf16r(52+r, 52+r)
    for r in range(4): g(f"v_mul_f32 v{56+r}, 0xbfb8aa3b, v{48+r}")
    for r in range(4): g(f"v_exp_f32 v{56+r}, v{56+r}")
    g.nop(1)
    for r in range(4): g(f"v_add_f32 v{56+r}, 1.0, v{56+r}")
    for r in range(4): g(f"v_rcp_f32 v{56+r}, v{56+r}")
    g.nop(1)
    for r in range(4): g(f"v_mul_f32 v{56+r}, v{48+r}, v{56+r}")
    for r in range(4): g.bf16r(56+r, 56+r)
    for r in range(4): g(f"v_mul_f32 v{56+r}, v{56+r}, v{52+r}")
    g("v_cvt_pk_bf16_f32 v56, v56, v57\nv_cvt_pk_bf16_f32 v57, v58, v59")
    g("s_mov_b32 exec_lo, 0x00030003\ns_mov_b32 exec_hi, 0\nglobal_store_dwordx2 v7, v[56:57], s[26:27] sc1\ns_mov_b64 exec, -1")
    g.stamp(14)
    g("s_branch L_fin")
    g("L_dstage:")
    g("v_lshrrev_b32 v5, 4, v1\nv_lshlrev_b32 v5, 3, v5\nv_bfe_u32 v6, v1, 2, 2\nv_add_u32 v5, v5, v6\nv_lshlrev_b32 v5, 5, v5\nv_and_b32 v6, 3, v1\nv_lshlrev_b32 v6, 3, v6\nv_add_u32 v5, v5, v6")
    g(f"s_mul_i32 s62, s34, 14336\ns_add_u32 s62, s62, {L_DIMG}\nv_add_u32 v5, s62, v5")
    for kb in range(14):
        g(f"ds_read_b64_tr_b16 v[{128+4*kb}:{129+4*kb}], v5 offset:{kb*1024}")
        g(f"ds_read_b64_tr_b16 v[{130+4*kb}:{131+4*kb}], v5 offset:{kb*1024 + 128}")
        if kb % 4 == 3: g("s_waitcnt lgkmcnt(0)")
    g("s_waitcnt lgkmcnt(0)")
    g(f"s_mul_i32 s52, s34, 896\ns_add_u32 s52, s52, {WS_ACT}\nv_and_b32 v6, 1, v1\nv_mul_u32_u24 v6, 3584, v6\nv_lshrrev_b32 v7, 4, v1\nv_lshlrev_b32 v7, 4, v7\nv_add_u32 v6, v6, v7\nv_add_u32 v6, s52, v6")
    for i in range(56): g(f"v_mov_b32 v{184+i}, 0")
    g("s_and_b32 s61, s2, 7\ns_lshl_b32 s61, s61, 2\ns_lshr_b32 s53, s2, 3\ns_sub_u32 s53, s53, 28\ns_add_u32 s61, s61, s53\ns_lshl_b32 s61, s61, 5")
    g("v_and_b32 v7, 1, v1\nv_lshlrev_b32 v7, 10, v7\nv_lshrrev_b32 v8, 4, v1\nv_lshlrev_b32 v8, 3, v8\nv_add_u32 v7, v7, v8\nv_add_u32 v7, s61, v7")
    g("s_mov_b32 s60, 0")
    l = g.lab("apoll")
    g(f"{l}:")
    g(f"s_add_u32 s60, s60, 1\ns_cmp_gt_u32 s60, {o.spin}\ns_cbranch_scc1 L_end")
    g("s_mov_b32 exec_lo, 0x00030003\ns_mov_b32 exec_hi, 0x00030003")
    for t in range(14): g(f"global_load_dwordx4 v[{184+4*t}:{187+4*t}], v6, s[26:27] offset:{t*64} sc1")
    g("s_mov_b64 exec, -1\nv_mov_b32 v48, 0\nv_mov_b32 v49, 0\nv_mov_b32 v50, 0\nv_mov_b32 v51, 0")
    for t in range(14):
        g(f"s_waitcnt vmcnt({13-t})")
        g(f"v_mfma_f32_16x16x32_bf16 v[48:51], v[{128+4*t}:{131+4*t}], v[{184+4*t}:{187+4*t}], v[48:51]")
    g.nop(8)
    g("v_add_f32 v52, v48, v49\nv_add_f32 v53, v50, v51\nv_add_f32 v52, v52, v53\nv_cmp_u_f32 vcc, v52, v52")
    g.nop(1); g(f"s_cbranch_vccnz {l}")
    g.stamp(13)
    g(f"s_lshl_b32 s52, s34, 10\nv_lshlrev_b32 v9, 4, v1\nv_add_u32 v10, s52, v9\nds_write_b128 v10, v[48:51] offset:{L_DRED}")
    lw = g.lab("dw4")
    g(f"s_cmp_eq_u32 s34, 0\ns_cbranch_scc0 {lw}")
    g(f"v_add_u32 v11, {WS_H}, v7\nglobal_load_dwordx2 v[20:21], v11, s[26:27] sc1")
    g(f"{lw}:\ns_waitcnt lgkmcnt(0)\ns_barrier")
    g("s_cmp_eq_u32 s34, 0\ns_cbranch_scc0 L_fin")
    for w in range(4): g(f"ds_read_b128 v[{32+4*w}:{35+4*w}], v9 offset:{L_DRED + w*1024}")
    g("s_waitcnt lgkmcnt(0)")
    for w in range(1, 4): g(f"v_pk_add_f32 v[32:33], v[32:33], v[{32+4*w}:{33+4*w}]\nv_pk_add_f32 v[34:35], v[34:35], v[{34+4*w}:{35+4*w}]")
    g("v_cvt_pk_bf16_f32 v36, v32, v33\nv_cvt_pk_bf16_f32 v37, v34, v35")
    g("v_lshlrev_b32 v32, 16, v36\nv_and_b32 v33, 0xffff0000, v36\nv_lshlrev_b32 v34, 16, v37\nv_and_b32 v35, 0xffff0000, v37")
    g("s_waitcnt vmcnt(0)")
    g("v_lshlrev_b32 v38, 16, v20\nv_and_b32 v39, 0xffff0000, v20\nv_lshlrev_b32 v40, 16, v21\nv_and_b32 v41, 0xffff0000, v21")
    g("v_pk_add_f32 v[32:33], v[32:33], v[38:39]\nv_pk_add_f32 v[34:35], v[34:35], v[40:41]")
    g("v_cvt_pk_bf16_f32 v36, v32, v33\nv_cvt_pk_bf16_f32 v37, v34, v35")
    g("s_mov_b32 exec_lo, 0x00030003\ns_mov_b32 exec_hi, 0x00030003\nglobal_store_dwordx2 v7, v[36:37], s[22:23]\ns_mov_b64 exec, -1")
    g.stamp(14)
    g("L_fin:")
    g.dump_stamps(15, 0)
    g("L_end:\ns_endpgm")

def gen(o):
    g = G(o)
    g("s_cmp_ge_u32 s2, 256\ns_cbranch_scc1 L_exit")
    g("s_load_dwordx16 s[4:19], s[0:1], 0\ns_load_dwordx8 s[20:27], s[0:1], 64")
    g("v_lshrrev_b32 v1, 6, v0\ns_nop 0\nv_readfirstlane_b32 s3, v1\nv_and_b32 v1, 63, v0")
    g("s_and_b32 s28, s2, 7\ns_lshl_b32 s28, s28, 2\ns_bfe_u32 s29, s2, 0x20003\ns_add_u32 s28, s28, s29")
    g("s_lshr_b32 s29, s2, 5\ns_and_b32 s30, s29, 1\ns_lshr_b32 s31, s29, 1")
    if o.stamps:
        for i in range(64, 96): g(f"s_mov_b32 s{i}, 0")
    g("s_waitcnt lgkmcnt(0)")
    g("s_cmp_lt_u32 s3, 4\ns_cbranch_scc0 L_tail_far")
    schedule_stream(g, o)
    g("L_exit:\ns_endpgm")
    g("L_tail_far:")
    tail(g, o)
    return wrap(g.text(), 256, 512, L_END, vgpr=256, sgpr=(102 if o.stamps else 64))

if __name__ == "__main__":
    ap = argparse.ArgumentParser()
    ap.add_argument("-o", default="k1.s")
    ap.add_argument("--R", type=int, default=6)
    ap.add_argument("--stamps", type=int, default=0)
    ap.add_argument("--mimic", type=int, default=1)
    ap.add_argument("--spin", type=int, default=100000)
    o = ap.parse_args()
    open(o.o, "w").write(gen(o))
    print("wrote", o.o, "LDS", L_END)
```

```python
import sys, argparse
from asmlib import *

LOG2E = 0x3fb8aa3b
WS_EPOCH = 0x0
WS_ML  = 0x1000
WS_HF  = 0x4000
WS_RF  = 0x6000
WS_QP  = 0x20000
WS_O   = 0x40000
WS_Y2  = 0x60000
WS_GP  = 0x80000
WS_DP  = 0x160000
L_QF   = 0
L_MLW  = 256
L_HINT = 320
L_XN   = 512
L_OACC = 2560
L_OB   = 4608
L_H32  = 5120
L_G2   = 5376
L_ACT  = 5888
L_IMG  = 8192
L_END  = 98304

class G(Asm):
    def __init__(s, opt):
        super().__init__(); s.o = opt; s.nlab = 0
    def lab(s, base):
        s.nlab += 1; return f"L_{base}_{s.nlab}"
    def nop(s, n):
        while n > 0:
            k = min(n, 16); s(f"s_nop {k-1}"); n -= k
    def stamp(s, idx):
        if not s.o.stamps: return
        s(f"s_memrealtime s[64:65]\ns_waitcnt lgkmcnt(0)\nv_writelane_b32 v0, s64, {idx}")
    def dump_stamps(s, n=0):
        if not s.o.stamps: return
        s("s_getreg_b32 s64, hwreg(HW_REG_XCC_ID)\ns_add_u32 s64, s64, 1\nv_writelane_b32 v0, s64, 31")
        s("s_add_u32 s96, s26, 0x10000000\ns_addc_u32 s97, s27, 0")
        s("s_lshl_b32 s98, s2, 3\ns_add_u32 s98, s98, s3\ns_lshl_b32 s98, s98, 7\ns_add_u32 s96, s96, s98\ns_addc_u32 s97, s97, 0")
        s("v_lshlrev_b32 v2, 2, v1\ns_mov_b32 exec_lo, -1\ns_mov_b32 exec_hi, 0\nglobal_store_dword v2, v0, s[96:97]\ns_mov_b64 exec, -1")
    def row_allreduce(s, op, regs, shifts=(8, 4, 2, 1)):
        for sh in shifts:
            s.nop(2 if len(regs) < 3 else 0)
            for r in regs: s(f"{op}_dpp v{r}, v{r}, v{r} row_ror:{sh} row_mask:0xf bank_mask:0xf")
    def xswap(s, which, op, regs, temps):
        for r, t in zip(regs, temps): s(f"v_mov_b32 v{t}, v{r}")
        s.nop(2)
        for r, t in zip(regs, temps): s(f"v_permlane{which}_swap_b32 v{r}, v{t}")
        s.nop(1)
        for r, t in zip(regs, temps): s(f"{op} v{r}, v{r}, v{t}")
    def bf16r(s, d, src):
        s(f"v_cvt_pk_bf16_f32 v{d}, v{src}, v{src}\nv_and_b32 v{d}, 0xffff0000, v{d}")
    def spin_check(s, cnt, limit):
        s(f"s_add_u32 {cnt}, {cnt}, 1\ns_cmp_gt_u32 {cnt}, {limit}\ns_cbranch_scc1 L_end")

    def layernorm(s, src, F, T, va):
        for i in range(8):
            s(f"v_lshlrev_b32 v{F+2*i}, 16, v{src+i}\nv_and_b32 v{F+2*i+1}, 0xffff0000, v{src+i}")
        S = T
        s(f"v_pk_add_f32 v[{T}:{T+1}], v[{F}:{F+1}], v[{F+2}:{F+3}]")
        for i in range(2, 8): s(f"v_pk_add_f32 v[{T}:{T+1}], v[{T}:{T+1}], v[{F+2*i}:{F+2*i+1}]")
        s(f"v_add_f32 v{S}, v{T}, v{T+1}")
        s.row_allreduce("v_add_f32", [S]); s.xswap(16, "v_add_f32", [S], [T+1])
        Mn = T+2
        s(f"v_mul_f32 v{Mn}, 0x3b000000, v{S}")
        s(f"v_mov_b32 v{Mn+1}, v{Mn}")
        s(f"v_readlane_b32 s62, v{Mn}, 0\nv_readlane_b32 s63, v{Mn}, 32")
        C = T+4
        s(f"v_mov_b32 v{T}, 0\nv_mov_b32 v{T+1}, 0")
        for i in range(8):
            s(f"v_pk_add_f32 v[{C}:{C+1}], v[{F+2*i}:{F+2*i+1}], v[{Mn}:{Mn+1}] neg_lo:[0,1] neg_hi:[0,1]")
            s(f"v_pk_fma_f32 v[{T}:{T+1}], v[{C}:{C+1}], v[{C}:{C+1}], v[{T}:{T+1}]")
        s(f"v_add_f32 v{S}, v{T}, v{T+1}")
        s.row_allreduce("v_add_f32", [S]); s.xswap(16, "v_add_f32", [S], [T+1])
        s(f"v_mul_f32 v{S}, 0x3b000000, v{S}")
        s.bf16r(S, S)
        s(f"v_add_f32 v{S}, 0x3727c5ac, v{S}")
        s.bf16r(S, S)
        s(f"v_sqrt_f32 v{S}, v{S}"); s.nop(1)
        s.bf16r(S, S)
        s(f"v_rcp_f32 v{S}, v{S}")
        s.bf16r(Mn, Mn); s(f"v_mov_b32 v{Mn+1}, v{Mn}\nv_mov_b32 v{S+1}, v{S}")
        for i in range(8):
            s(f"v_pk_add_f32 v[{C}:{C+1}], v[{F+2*i}:{F+2*i+1}], v[{Mn}:{Mn+1}] neg_lo:[0,1] neg_hi:[0,1]")
            s(f"v_cvt_pk_bf16_f32 v{C}, v{C}, v{C+1}")
            s(f"v_and_b32 v{C+1}, 0xffff0000, v{C}\nv_lshlrev_b32 v{C}, 16, v{C}")
            s(f"v_pk_mul_f32 v[{C}:{C+1}], v[{C}:{C+1}], v[{S}:{S+1}]")
            s(f"v_cvt_pk_bf16_f32 v{F+i}, v{C}, v{C+1}")
        s(f"ds_write_b128 v{va}, v[{F}:{F+3}] offset:{L_XN}\nds_write_b128 v{va}, v[{F+4}:{F+7}] offset:{L_XN+16}")

    def masks(s, MK, T, two_batch):
        s(f"v_and_b32 v{T}, {7 if two_batch else 15}, v1")
        for r in range(4):
            s(f"v_lshrrev_b32 v{T+1}, 1, v{T}\nv_cmp_eq_u32 vcc, {r}, v{T+1}\nv_and_b32 v{T+2}, 1, v{T}\nv_cmp_eq_u32 s[46:47], 1, v{T+2}")
            s(f"v_mov_b32 v{T+3}, 0xffff\nv_mov_b32 v{T+4}, 0xffff0000\nv_cndmask_b32 v{T+3}, v{T+3}, v{T+4}, s[46:47]\nv_cndmask_b32 v{MK+r}, 0, v{T+3}, vcc")

def schedule_stream(g, o):
    R, RING = o.R, 32
    RB, SB = 128, 64
    Q, ACC, MK, A0 = 8, 12, 16, 20
    a0, x, y = 28, 32, 33
    MX, TMP = 34, 35
    LS, PP = 42, 44
    VOFF = 2
    N = 256
    st = dict(i=0, c=0, arrived=-1)
    cur = {0: None, 1: None}
    def slot(j): return RB + 4 * (j % RING)
    def wait_arrived(j):
        if st['arrived'] >= j: return
        g(f"s_waitcnt vmcnt({st['i'] - 1 - j})"); st['arrived'] = j
    def issue():
        j = st['i']
        assert j - 4 * st['c'] < RING, (j, st)
        if j >= R: wait_arrived(j - R)
        kv = 0 if j < 128 else 1
        t = (j % 128) // 4
        if cur[kv] != t:
            g(f"s_mov_b32 s{44+kv}, {t * 16384}"); cur[kv] = t
        srd = "s[36:39]" if kv == 0 else "s[40:43]"
        r = slot(j)
        g(f"buffer_load_dwordx4 v[{r}:{r+3}], v{VOFF}, {srd}, s{44+kv} offen offset:{(j % 4) * 1024} nt")
        st['i'] += 1
    def can_issue(): return st['i'] - 4 * st['c'] < RING and st['i'] < N
    def consume_k(t, n_issue):
        base = 4 * t
        wait_arrived(base + 3)
        rs = [slot(base + u) for u in range(4)]
        if o.dbg_nok:
            st['c'] += 1
            g(f"v_mov_b32 v{SB+t}, 0")
            for _ in range(n_issue):
                if can_issue(): issue()
            return
        for u in range(4): g(f"v_dot2_f32_bf16 v{a0+u}, v{rs[u]}, v{Q}, 0")
        for k in range(1, 4):
            for u in range(4): g(f"v_dot2c_f32_bf16 v{a0+u}, v{rs[u]+k}, v{Q+k}")
        st['c'] += 1
        pend = [n_issue]
        def maybe(nw):
            if pend[0] > 0 and can_issue():
                issue(); pend[0] -= 1
            g.nop(nw)
        maybe(1)
        g(f"v_add_f32_dpp v{x}, v{a0}, v{a0} row_ror:8 row_mask:0xf bank_mask:0x3")
        g(f"v_add_f32_dpp v{x}, v{a0+1}, v{a0+1} row_ror:8 row_mask:0xf bank_mask:0xc")
        g(f"v_add_f32_dpp v{y}, v{a0+2}, v{a0+2} row_ror:8 row_mask:0xf bank_mask:0x3")
        g(f"v_add_f32_dpp v{y}, v{a0+3}, v{a0+3} row_ror:8 row_mask:0xf bank_mask:0xc")
        maybe(1)
        S = SB + t
        g(f"v_add_f32_dpp v{S}, v{x}, v{x} row_shl:4 row_mask:0xf bank_mask:0x5")
        g(f"v_add_f32_dpp v{S}, v{y}, v{y} row_shr:4 row_mask:0xf bank_mask:0xa")
        maybe(2)
        g(f"v_add_f32_dpp v{S}, v{S}, v{S} quad_perm:[1,0,3,2] row_mask:0xf bank_mask:0xf")
        maybe(2)
        g(f"v_add_f32_dpp v{S}, v{S}, v{S} quad_perm:[2,3,0,1] row_mask:0xf bank_mask:0xf")
        if o.mimic:
            g.bf16r(S, S); g(f"v_mul_f32 v{S}, 0x3db504f3, v{S}"); g.bf16r(S, S)
        else:
            g(f"v_mul_f32 v{S}, 0x3db504f3, v{S}")
        g(f"v_max_f32 v{MX}, v{MX}, v{S}")
        while pend[0] > 0 and can_issue(): issue(); pend[0] -= 1
    def consume_v(t, n_issue):
        base = 128 + 4 * t
        S = SB + t
        g(f"v_cvt_pk_bf16_f32 v{PP}, v{S}, v{S}")
        wait_arrived(base + 3)
        if o.dbg_nov:
            st['c'] += 1
            for _ in range(n_issue):
                if can_issue(): issue()
            return
        g.nop(2)
        bank = [0, 2, 1, 3]
        for u in range(4):
            A = A0 + 4 * (u & 1)
            for r in range(4): g(f"v_and_b32_dpp v{A+r}, v{PP}, v{MK+r} row_newbcast:{4*bank[u]} row_mask:0xf bank_mask:0xf")
            g.nop(2)
            rv = slot(base + u)
            g(f"v_mfma_f32_16x16x32_bf16 v[{ACC}:{ACC+3}], v[{A}:{A+3}], v[{rv}:{rv+3}], v[{ACC}:{ACC+3}]")
        st['c'] += 1
        for _ in range(n_issue):
            if can_issue(): issue()

    g("s_lshl_b32 s32, s30, 5\ns_add_u32 s32, s32, s28\ns_lshl_b32 s32, s32, 21\ns_lshl_b32 s33, s31, 19\ns_add_u32 s32, s32, s33")
    g("s_add_u32 s36, s6, s32\ns_addc_u32 s37, s7, 0\ns_and_b32 s37, s37, 0xffff\ns_mov_b32 s38, 0x80000\ns_mov_b32 s39, 0x20000")
    g("s_add_u32 s40, s8, s32\ns_addc_u32 s41, s9, 0\ns_and_b32 s41, s41, 0xffff\ns_mov_b32 s42, 0x80000\ns_mov_b32 s43, 0x20000")
    g(f"s_lshl_b32 s33, s3, 12\nv_lshlrev_b32 v{VOFF}, 4, v1\nv_add_u32 v{VOFF}, s33, v{VOFF}")
    g.stamp(0)
    for _ in range(R): issue()
    g.masks(MK, TMP, False)
    for r in range(4): g(f"v_mov_b32 v{ACC+r}, 0")
    g(f"v_mov_b32 v{MX}, 0xff800000")
    while st['i'] < RING: issue()
    g.stamp(1)
    g("s_barrier")
    g.stamp(2)
    g(f"v_and_b32 v{TMP}, 15, v1\nv_lshlrev_b32 v{TMP}, 4, v{TMP}\nds_read_b128 v[{Q}:{Q+3}], v{TMP} offset:{L_QF}\ns_waitcnt lgkmcnt(0)")
    GAP = R + 3
    while st['c'] < 32:
        gap_after = st['i'] - 4 * (st['c'] + 1)
        consume_k(st['c'], 1 if gap_after > GAP else 4)
    g.stamp(3)
    g.row_allreduce("v_max_f32", [MX]); g.xswap(16, "v_max_f32", [MX], [TMP]); g.xswap(32, "v_max_f32", [MX], [TMP])
    MC = TMP + 1
    g(f"v_mul_f32 v{MC}, {hex(LOG2E)}, v{MX}\nv_mov_b32 v{TMP+2}, {hex(LOG2E)}\nv_mov_b32 v{LS}, 0")
    for t in range(32):
        S = SB + t
        g(f"v_fma_f32 v{S}, v{S}, v{TMP+2}, -v{MC}\nv_exp_f32 v{S}, v{S}")
        if t > 0: g(f"v_add_f32 v{LS}, v{LS}, v{SB+t-1}")
        if t % 8 == 3 and can_issue() and st['i'] - 4 * st['c'] < GAP + 4: issue()
    g.nop(1); g(f"v_add_f32 v{LS}, v{LS}, v{SB+31}")
    g.row_allreduce("v_add_f32", [LS]); g.xswap(16, "v_add_f32", [LS], [TMP]); g.xswap(32, "v_add_f32", [LS], [TMP])
    g(f"v_mul_f32 v{LS}, 0x3e800000, v{LS}")
    P2 = 46
    g(f"v_mov_b32 v{P2}, v{MX}\nv_mov_b32 v{P2+1}, v{LS}")
    g(f"s_lshl_b32 s33, s3, 3\nv_mov_b32 v{TMP}, s33\ns_mov_b64 exec, 1\nds_write_b64 v{TMP}, v[{P2}:{P2+1}] offset:{L_MLW}\ns_mov_b64 exec, -1")
    g.stamp(4)
    while st['c'] < 64:
        t = st['c'] - 32
        gap_after = st['i'] - 4 * (st['c'] + 1)
        consume_v(t, 1 if gap_after > GAP else 4)
        if t == o.hint_tile:
            g(f"v_mov_b32 v{TMP}, 0\nv_mov_b32 v{TMP+1}, 1\ns_mov_b64 exec, 1\nds_write_b32 v{TMP}, v{TMP+1} offset:{L_HINT}\ns_mov_b64 exec, -1")
    g.stamp(5)
    g(f"v_and_b32 v{TMP}, 15, v1\nv_lshlrev_b32 v{TMP}, 5, v{TMP}\nv_lshrrev_b32 v{TMP+1}, 4, v1\nv_lshlrev_b32 v{TMP+1}, 4, v{TMP+1}\nv_add_u32 v{TMP}, v{TMP}, v{TMP+1}")
    g(f"s_lshl_b32 s33, s3, 9\nv_add_u32 v{TMP}, s33, v{TMP}")
    g.nop(8)
    g(f"s_mov_b32 exec_hi, 0\nds_write_b128 v{TMP}, v[{ACC}:{ACC+3}] offset:{L_OACC}\ns_waitcnt lgkmcnt(0)\ns_mov_b32 exec_hi, -1")
    g("s_barrier")
    g.stamp(6)
    g.dump_stamps(7)
    g("s_endpgm")

def tagchk(g, acc, regs, first):
    for i, r in enumerate(regs):
        if first and i == 0: g(f"v_xor_b32 v{acc}, s59, v{r}")
        else: g(f"v_bitop3_b32 v{acc}, v{acc}, v{r}, s59 bitop3:0xf6")
def tagend(g, acc, loop, sleep=0):
    g(f"v_and_b32 v{acc}, 0xff, v{acc}\nv_cmp_ne_u32 vcc, 0, v{acc}")
    if sleep:
        l = g.lab("tok")
        g(f"s_cbranch_vccz {l}\ns_sleep {sleep}\ns_branch {loop}\n{l}:")
    else:
        g.nop(1); g(f"s_cbranch_vccnz {loop}")
def addtag(g, regs):
    for r in regs: g(f"v_and_or_b32 v{r}, v{r}, s61, v56")

def dma_tile(g, o, n, vaddr, srd, m0_of, soff_of, R_t):
    for t in range(n):
        if t >= R_t: g(f"s_waitcnt vmcnt({R_t-1})")
        g(f"s_mov_b32 m0, {m0_of(t)}\ns_mov_b32 s54, {soff_of(t)}")
        g(f"buffer_load_dwordx4 v{vaddr}, {srd}, s54 offen nt lds")
    g("s_waitcnt vmcnt(0)")

def tr_tile128(g, va, base):
    n = 0
    for cb in range(4):
        for kb in range(4):
            r = base + (cb * 4 + kb) * 4
            g(f"ds_read_b64_tr_b16 v[{r}:{r+1}], v{va} offset:{kb*4096 + cb*32}\nds_read_b64_tr_b16 v[{r+2}:{r+3}], v{va} offset:{kb*4096 + cb*32 + 512}")
            n += 2
            if n % 8 == 0: g("s_waitcnt lgkmcnt(0)")

def gate(g, o, name, addr_sgpr_expr, sleep):
    l = g.lab(name)
    g(f"v_and_b32 v8, 7, v1\nv_lshlrev_b32 v8, 2, v8\nv_add_u32 v8, s52, v8\ns_mov_b32 s60, 0\n{l}:\nglobal_load_dword v9, v8, s[26:27] sc1\ns_waitcnt vmcnt(0)\nv_cmp_ne_u32 vcc, s58, v9")
    g.spin_check("s60", o.spin)
    g(f"s_cbranch_vccz {l}_ok")
    if sleep: g(f"s_sleep {sleep}")
    g(f"s_branch {l}\n{l}_ok:")

def tail(g, o):
    g("L_tail:")
    g.stamp(0)
    if o.dbg_noq:
        g("s_barrier\ns_barrier")
        g.stamp(11)
        g("s_branch L_fin")
    g(f"s_load_dword s58, s[26:27], {WS_EPOCH}")
    g("v_lshrrev_b32 v2, 5, v1\nv_lshlrev_b32 v2, 10, v2\nv_and_b32 v3, 31, v1\nv_lshlrev_b32 v3, 5, v3\nv_add_u32 v2, v2, v3")
    g("global_load_dwordx4 v[8:11], v2, s[4:5] nt\nglobal_load_dwordx4 v[12:15], v2, s[4:5] offset:16 nt")
    g("s_mov_b32 s48, s10\ns_and_b32 s49, s11, 0xffff\ns_mov_b32 s50, 0x400000\ns_mov_b32 s51, 0x20000")
    g("s_lshl_b32 s52, s28, 8\ns_lshl_b32 s53, s30, 7\ns_add_u32 s52, s52, s53\ns_lshl_b32 s53, s31, 20\ns_add_u32 s52, s52, s53")
    g("v_lshrrev_b32 v4, 3, v1\nv_lshlrev_b32 v4, 13, v4\nv_and_b32 v5, 7, v1\nv_lshlrev_b32 v5, 4, v5\nv_add_u32 v4, v4, v5\nv_add_u32 v4, s52, v4")
    for t in range(16):
        g(f"s_mov_b32 m0, {L_IMG + t*1024}\ns_mov_b32 s54, {t * 8 * 8192}")
        g("buffer_load_dwordx4 v4, s[48:51], s54 offen nt lds")
    g(f"v_mov_b32 v20, -1\nv_lshlrev_b32 v21, 2, v1\ns_mov_b64 exec, 0xff\nds_write_b32 v21, v20 offset:{L_MLW}\ns_mov_b64 exec, 1\nv_mov_b32 v20, 0\nv_mov_b32 v21, 0\nds_write_b32 v21, v20 offset:{L_HINT}\ns_mov_b64 exec, -1")
    g(f"v_lshrrev_b32 v5, 4, v1\nv_lshlrev_b32 v5, 3, v5\nv_bfe_u32 v6, v1, 2, 2\nv_add_u32 v5, v5, v6\nv_lshlrev_b32 v5, 7, v5\nv_and_b32 v6, 3, v1\nv_lshlrev_b32 v6, 3, v6\nv_add_u32 v5, v5, v6\nv_add_u32 v5, {L_IMG}, v5")
    g("s_waitcnt vmcnt(16) lgkmcnt(0)")
    g.stamp(1)
    g("s_add_u32 s58, s58, 1\ns_and_b32 s59, s58, 0xff\ns_mov_b32 s61, 0xffffff00\nv_mov_b32 v56, s59")
    g.layernorm(8, 16, 32, 2)
    g("v_and_b32 v6, 1, v1\nv_lshlrev_b32 v6, 10, v6\nv_lshrrev_b32 v7, 4, v1\nv_lshlrev_b32 v7, 4, v7\nv_add_u32 v6, v6, v7\ns_lshl_b32 s52, s31, 8\nv_add_u32 v6, s52, v6")
    g("s_waitcnt lgkmcnt(0)")
    for kb in range(4): g(f"ds_read_b128 v[{40+4*kb}:{43+4*kb}], v6 offset:{L_XN + kb*64}")
    g("s_waitcnt vmcnt(0)")
    g.stamp(2)
    tr_tile128(g, 5, 128)
    for i in range(16): g(f"v_mov_b32 v{64+i}, 0")
    g("s_waitcnt lgkmcnt(0)")
    for kb in range(4):
        for cb in range(4):
            r = 128 + (cb * 4 + kb) * 4
            g(f"v_mfma_f32_16x16x32_bf16 v[{64+4*cb}:{67+4*cb}], v[{r}:{r+3}], v[{40+4*kb}:{43+4*kb}], v[{64+4*cb}:{67+4*cb}]")
    g("s_lshl_b32 s52, s28, 12\ns_lshl_b32 s53, s31, 9\ns_add_u32 s52, s52, s53\ns_lshl_b32 s53, s30, 8\ns_add_u32 s52, s52, s53")
    g(f"s_add_u32 s52, s52, {WS_QP}\nv_and_b32 v7, 1, v1\nv_lshlrev_b32 v7, 11, v7\nv_lshrrev_b32 v8, 4, v1\nv_lshlrev_b32 v8, 4, v8\nv_add_u32 v7, v7, v8\nv_add_u32 v7, s52, v7")
    g.nop(2)
    addtag(g, range(64, 80))
    g("s_mov_b32 exec_lo, 0x00030003\ns_mov_b32 exec_hi, 0x00030003")
    for cb in range(4): g(f"global_store_dwordx4 v7, v[{64+4*cb}:{67+4*cb}], s[26:27] offset:{cb*64} sc1")
    g("s_mov_b64 exec, -1")
    g.stamp(3)
    g(f"s_lshl_b32 s52, s28, 12\ns_lshl_b32 s53, s30, 11\ns_add_u32 s52, s52, s53\ns_add_u32 s52, s52, {WS_QP}\nv_lshlrev_b32 v7, 4, v1\nv_add_u32 v7, s52, v7")
    g("s_mov_b32 s60, 0")
    if o.qsleep: g(f"s_sleep {o.qsleep}")
    l = g.lab("qpoll")
    g(f"{l}:\nglobal_load_dwordx4 v[8:11], v7, s[26:27] sc1\nglobal_load_dwordx4 v[12:15], v7, s[26:27] offset:1024 sc1")
    g.spin_check("s60", o.spin)
    g("s_waitcnt vmcnt(1)"); tagchk(g, 16, range(8, 12), True)
    g("s_waitcnt vmcnt(0)"); tagchk(g, 16, range(12, 16), False)
    tagend(g, 16, l, o.qsleep2)
    g.stamp(4)
    g("v_pk_add_f32 v[8:9], v[8:9], v[12:13]\nv_pk_add_f32 v[10:11], v[10:11], v[14:15]")
    g.xswap(32, "v_add_f32", [8, 9, 10, 11], [12, 13, 14, 15])
    g(f"v_cvt_pk_bf16_f32 v8, v8, v9\nv_cvt_pk_bf16_f32 v9, v10, v11\nv_and_b32 v10, 31, v1\nv_lshlrev_b32 v10, 3, v10\nds_write_b64 v10, v[8:9] offset:{L_QF}\ns_waitcnt lgkmcnt(0)")
    g("s_barrier")
    g.stamp(5)
    if o.dbg_notail:
        g("s_barrier")
        g.stamp(11)
        g("s_branch L_fin")
    def sect(name):
        if name in o.dbg_skip: g(f"s_branch L_skip_{name}")
    def endsect(name):
        if name in o.dbg_skip: g(f"L_skip_{name}:")
    sect("wo")
    g("s_mov_b32 s48, s12\ns_and_b32 s49, s13, 0xffff\ns_mov_b32 s50, 0x400000\ns_mov_b32 s51, 0x20000")
    g("s_lshl_b32 s52, s28, 17\ns_lshl_b32 s53, s29, 7\ns_add_u32 s52, s52, s53")
    g("v_lshrrev_b32 v4, 3, v1\nv_lshlrev_b32 v4, 10, v4\nv_and_b32 v6, 7, v1\nv_lshlrev_b32 v6, 4, v6\nv_add_u32 v4, v4, v6\nv_add_u32 v4, s52, v4")
    dma_tile(g, o, 16, 4, "s[48:51]", lambda t: L_IMG + t * 1024, lambda t: t * 8 * 1024, o.Rt)
    tr_tile128(g, 5, 128)
    g("s_waitcnt lgkmcnt(0)")
    endsect("wo")
    g.stamp(6)
    sect("g1")
    l1 = g.lab("nog1")
    g(f"s_cmp_lt_u32 s2, 224\ns_cbranch_scc0 {l1}")
    g("s_and_b32 s52, s2, 15\ns_mul_i32 s52, s52, 32*3584\ns_lshr_b32 s53, s2, 4\ns_lshl_b32 s53, s53, 8\ns_add_u32 s52, s52, s53")
    g("v_lshrrev_b32 v4, 4, v1\nv_mul_u32_u24 v4, 3584, v4\nv_and_b32 v6, 15, v1\nv_lshlrev_b32 v6, 4, v6\nv_add_u32 v4, v4, v6\nv_add_u32 v4, s52, v4")
    for m, (lo, hi) in enumerate((("s16", "s17"), ("s18", "s19"))):
        g(f"s_mov_b32 s48, {lo}\ns_and_b32 s49, {hi}, 0xffff\ns_mov_b32 s50, {512*3584}\ns_mov_b32 s51, 0x20000")
        for t in range(8):
            if t >= o.Rt or m > 0: g(f"s_waitcnt vmcnt({o.Rt-1})")
            g(f"s_mov_b32 m0, {L_IMG + m*8192 + t*1024}\ns_mov_b32 s54, {t*4*3584}")
            g("buffer_load_dwordx4 v4, s[48:51], s54 offen nt lds")
    g("s_waitcnt vmcnt(0)")
    g(f"v_lshrrev_b32 v6, 4, v1\nv_lshlrev_b32 v6, 3, v6\nv_bfe_u32 v7, v1, 2, 2\nv_add_u32 v6, v6, v7\nv_lshlrev_b32 v6, 8, v6\nv_and_b32 v7, 3, v1\nv_lshlrev_b32 v7, 3, v7\nv_add_u32 v6, v6, v7\nv_add_u32 v6, {L_IMG}, v6")
    for m in range(2):
        for u in range(8):
            r = 192 + (m * 8 + u) * 4
            g(f"ds_read_b64_tr_b16 v[{r}:{r+1}], v6 offset:{m*8192 + u*32}\nds_read_b64_tr_b16 v[{r+2}:{r+3}], v6 offset:{m*8192 + u*32 + 1024}")
            if u % 4 == 3: g("s_waitcnt lgkmcnt(0)")
    g("s_and_b32 s52, s2, 15\ns_lshl_b32 s52, s52, 6\nv_bfe_u32 v8, v1, 3, 1\nv_lshlrev_b32 v8, 10, v8\nv_and_b32 v9, 7, v1\nv_lshlrev_b32 v9, 3, v9\nv_add_u32 v8, v8, v9\nv_add_u32 v8, s52, v8\nglobal_load_dwordx2 v[58:59], v8, s[4:5]")
    g(f"s_lshr_b32 s52, s2, 4\ns_lshl_b32 s52, s52, 16\ns_and_b32 s53, s2, 15\ns_lshl_b32 s53, s53, 9\ns_add_u32 s52, s52, s53\ns_add_u32 s55, s52, {WS_GP}")
    g(f"{l1}:")
    endsect("g1")
    sect("wd")
    l1 = g.lab("nowd")
    g(f"s_cmp_ge_u32 s2, 144\ns_cbranch_scc0 {l1}")
    g(f"s_mov_b32 s48, s20\ns_and_b32 s49, s21, 0xffff\ns_mov_b32 s50, {1792*1024}\ns_mov_b32 s51, 0x20000")
    g("s_sub_u32 s52, s2, 144\ns_lshl_b32 s52, s52, 14\nv_lshrrev_b32 v4, 4, v1\nv_lshlrev_b32 v4, 10, v4\nv_and_b32 v6, 15, v1\nv_lshlrev_b32 v6, 4, v6\nv_add_u32 v4, v4, v6\nv_add_u32 v4, s52, v4")
    for i in range(16):
        t, cb4 = i // 4, i % 4
        if i >= o.Rt: g(f"s_waitcnt vmcnt({o.Rt-1})")
        g(f"s_mov_b32 s54, {t*4096}\nbuffer_load_dwordx4 v[{64+4*i}:{67+4*i}], v4, s[48:51], s54 offen offset:{cb4*256} nt")
    g(f"{l1}:")
    endsect("wd")
    g("s_waitcnt vmcnt(0) lgkmcnt(0)")
    g.stamp(7)
    sect("ml")
    l = g.lab("mlw")
    g(f"v_and_b32 v8, 3, v1\nv_lshlrev_b32 v9, 3, v8\ns_mov_b32 s60, 0\n{l}:\nds_read_b64 v[10:11], v9 offset:{L_MLW}\ns_waitcnt lgkmcnt(0)\nv_cmp_u_f32 vcc, v10, v11")
    g.spin_check("s60", o.spin * 20)
    g(f"s_cbranch_vccz {l}_ok\ns_sleep {o.mlsleep}\ns_branch {l}\n{l}_ok:")
    g.stamp(8)
    def quad(op, r):
        g.nop(2); g(f"{op}_dpp v{r}, v{r}, v{r} quad_perm:[1,0,3,2] row_mask:0xf bank_mask:0xf")
        g.nop(2); g(f"{op}_dpp v{r}, v{r}, v{r} quad_perm:[2,3,0,1] row_mask:0xf bank_mask:0xf")
    g("v_mov_b32 v12, v10"); quad("v_max_f32", 12)
    g(f"v_sub_f32 v13, v10, v12\nv_mul_f32 v13, {hex(LOG2E)}, v13\nv_exp_f32 v13, v13"); g.nop(1)
    g("v_mul_f32 v13, v13, v11"); quad("v_add_f32", 13)
    g(f"s_lshl_b32 s52, s30, 5\ns_add_u32 s52, s52, s28\ns_lshl_b32 s52, s52, 7\ns_add_u32 s52, s52, {WS_ML}")
    g("s_lshl_b32 s53, s31, 4\ns_add_u32 s53, s53, s52\nv_mov_b32 v14, s58\nv_mov_b32 v15, s58\nv_mov_b32 v20, s53\ns_mov_b64 exec, 1\nglobal_store_dwordx4 v20, v[12:15], s[26:27] sc1\ns_mov_b64 exec, -1")
    l = g.lab("mlg")
    g(f"v_lshlrev_b32 v21, 4, v8\nv_add_u32 v21, s52, v21\ns_mov_b32 s60, 0\n{l}:\nglobal_load_dwordx4 v[16:19], v21, s[26:27] sc1\ns_waitcnt vmcnt(0)\nv_cmp_ne_u32 vcc, s58, v18\nv_cmp_ne_u32 s[56:57], s58, v19")
    g.spin_check("s60", o.spin)
    g(f"s_or_b64 vcc, vcc, s[56:57]\ns_cbranch_vccz {l}_ok\ns_sleep {o.mlsleep2}\ns_branch {l}\n{l}_ok:")
    g("v_mov_b32 v18, v16"); quad("v_max_f32", 18)
    g(f"v_sub_f32 v19, v16, v18\nv_mul_f32 v19, {hex(LOG2E)}, v19\nv_exp_f32 v19, v19"); g.nop(1)
    g("v_mul_f32 v19, v19, v17"); quad("v_add_f32", 19)
    g(f"v_rcp_f32 v19, v19\nv_sub_f32 v10, v10, v18\nv_mul_f32 v10, {hex(LOG2E)}, v10\nv_exp_f32 v10, v10"); g.nop(1)
    g("v_mul_f32 v10, v10, v19"); g.nop(1)
    for w in range(4): g(f"v_readlane_b32 s{32+w}, v10, {w}")
    endsect("ml")
    g.stamp(9)
    g("v_and_b32 v2, 31, v1\nv_lshlrev_b32 v2, 4, v2")
    g(f"s_lshl_b32 s52, s28, 12\ns_add_u32 s52, s52, {WS_O}\nv_lshlrev_b32 v3, 4, v1\nv_add_u32 v3, s52, v3")
    g("v_and_b32 v4, 31, v1\nv_lshlrev_b32 v4, 3, v4\nv_and_b32 v6, 1, v1\nv_lshlrev_b32 v6, 8, v6\nv_lshrrev_b32 v7, 4, v1\nv_lshlrev_b32 v7, 4, v7\nv_add_u32 v6, v6, v7")
    g(f"s_lshl_b32 s52, s28, 3\ns_lshl_b32 s53, s30, 2\ns_add_u32 s52, s52, s53\ns_add_u32 s52, s52, s31\ns_lshl_b32 s52, s52, 9\ns_add_u32 s52, s52, {WS_O}")
    g("v_and_b32 v62, 31, v1\nv_lshlrev_b32 v62, 4, v62\nv_add_u32 v62, s52, v62")
    g(f"s_lshl_b32 s52, s29, 14\ns_lshl_b32 s53, s28, 8\ns_add_u32 s52, s52, s53\ns_add_u32 s52, s52, {WS_Y2}")
    g("v_and_b32 v63, 1, v1\nv_lshlrev_b32 v63, 7, v63\nv_lshrrev_b32 v8, 4, v1\nv_lshlrev_b32 v8, 4, v8\nv_add_u32 v63, v63, v8\nv_add_u32 v63, s52, v63")
    for i in range(16): g(f"v_mov_b32 v{40+i}, 0")
    sect("hint")
    l = g.lab("hint")
    g(f"v_mov_b32 v8, 0\ns_mov_b32 s60, 0\n{l}:\nds_read_b32 v9, v8 offset:{L_HINT}\ns_waitcnt lgkmcnt(0)\nv_cmp_eq_u32 vcc, 0, v9")
    g.spin_check("s60", o.spin * 20)
    g(f"s_cbranch_vccz {l}_ok\ns_sleep {o.hintsleep}\ns_branch {l}\n{l}_ok:")
    g(f"s_lshl_b32 s52, s28, 7\ns_lshl_b32 s53, s29, 2\ns_add_u32 s52, s52, s53\ns_add_u32 s52, s52, {WS_HF}\nv_mov_b32 v8, s52\nv_mov_b32 v9, s58\ns_mov_b64 exec, 1\nglobal_store_dword v8, v9, s[26:27] sc1\ns_mov_b64 exec, -1")
    l1 = g.lab("norep")
    g(f"s_cmp_lt_u32 s2, 8\ns_cbranch_scc0 {l1}")
    g(f"s_lshl_b32 s52, s2, 2\ns_add_u32 s52, s52, {WS_RF}\nv_lshlrev_b32 v8, 7, v1\nv_add_u32 v8, s52, v8\ns_mov_b64 exec, 0xffff\nglobal_store_dword v8, v9, s[26:27] sc1\ns_mov_b64 exec, -1")
    g(f"{l1}:")
    endsect("hint")
    g.stamp(10)
    g("s_barrier")
    g.stamp(11)
    if o.dbg_endb3: g("s_branch L_fin")
    for w in range(4): g(f"ds_read_b128 v[{8+4*w}:{11+4*w}], v2 offset:{L_OACC + w*512}")
    g("s_waitcnt lgkmcnt(3)")
    for r in range(4): g(f"v_mul_f32 v{8+r}, s32, v{8+r}")
    for w in range(1, 4):
        g(f"s_waitcnt lgkmcnt({3-w})")
        for r in range(4): g(f"v_fmac_f32 v{8+r}, s{32+w}, v{8+4*w+r}")
    addtag(g, range(8, 12))
    g("s_mov_b32 exec_hi, 0\nglobal_store_dwordx4 v62, v[8:11], s[26:27] sc1\ns_mov_b32 exec_hi, -1")
    if o.agate:
        g(f"s_lshl_b32 s52, s28, 7\ns_add_u32 s52, s52, {WS_HF}")
        gate(g, o, "agate", None, o.gsleep)
    l = g.lab("opoll")
    g(f"s_mov_b32 s60, 0\n{l}:")
    for t in range(4): g(f"global_load_dwordx4 v[{8+4*t}:{11+4*t}], v3, s[26:27] offset:{t*1024} sc1")
    g.spin_check("s60", o.spin)
    for t in range(4):
        g(f"s_waitcnt vmcnt({3-t})"); tagchk(g, 24, range(8+4*t, 12+4*t), t == 0)
        if t == 1: g("v_pk_add_f32 v[8:9], v[8:9], v[12:13]\nv_pk_add_f32 v[10:11], v[10:11], v[14:15]")
    tagend(g, 24, l, 0)
    g.stamp(12)
    g("v_pk_add_f32 v[16:17], v[16:17], v[20:21]\nv_pk_add_f32 v[18:19], v[18:19], v[22:23]")
    g.xswap(32, "v_add_f32", [8, 9, 10, 11, 16, 17, 18, 19], [24, 25, 26, 27, 28, 29, 30, 31])
    g("v_cvt_pk_bf16_f32 v8, v8, v9\nv_cvt_pk_bf16_f32 v9, v10, v11\nv_cvt_pk_bf16_f32 v10, v16, v17\nv_cvt_pk_bf16_f32 v11, v18, v19")
    g(f"ds_write_b64 v4, v[8:9] offset:{L_OB}\nds_write_b64 v4, v[10:11] offset:{L_OB+256}\ns_waitcnt lgkmcnt(0)")
    for kb in range(4): g(f"ds_read_b128 v[{16+4*kb}:{19+4*kb}], v6 offset:{L_OB + kb*64}")
    for kb in range(4):
        g(f"s_waitcnt lgkmcnt({3-kb})")
        for cb in range(4):
            r = 128 + (cb * 4 + kb) * 4
            g(f"v_mfma_f32_16x16x32_bf16 v[{40+4*cb}:{43+4*cb}], v[{r}:{r+3}], v[{16+4*kb}:{19+4*kb}], v[{40+4*cb}:{43+4*cb}]")
    g("v_add_u32 v8, 8192, v63")
    g.nop(4)
    addtag(g, range(40, 44)); g.nop(1); addtag(g, range(44, 56))
    g("s_mov_b32 exec_lo, 0x00030003\ns_mov_b32 exec_hi, 0x00030003")
    g("global_store_dwordx4 v63, v[40:43], s[26:27] sc1\nglobal_store_dwordx4 v63, v[44:47], s[26:27] offset:64 sc1\nglobal_store_dwordx4 v8, v[48:51], s[26:27] sc1\nglobal_store_dwordx4 v8, v[52:55], s[26:27] offset:64 sc1")
    g("s_mov_b64 exec, -1")
    g.stamp(13)
    if o.ggate:
        g(f"s_and_b32 s52, s2, 15\ns_lshl_b32 s52, s52, 7\ns_add_u32 s52, s52, {WS_RF}")
        gate(g, o, "ggate", None, o.gsleep)
    g("s_cmp_lt_u32 s2, 224\ns_cbranch_scc0 L_g2pre")
    g(f"s_and_b32 s52, s2, 15\ns_lshl_b32 s52, s52, 13\ns_add_u32 s52, s52, {WS_Y2}\nv_lshlrev_b32 v3, 4, v1\nv_add_u32 v3, s52, v3\nv_add_u32 v4, 4096, v3")
    g("v_bfe_u32 v6, v1, 3, 1\nv_lshlrev_b32 v6, 6, v6\nv_and_b32 v7, 7, v1\nv_lshlrev_b32 v7, 3, v7\nv_add_u32 v6, v6, v7")
    g(f"v_mov_b32 v8, 0x3f803f80\nv_lshlrev_b32 v9, 2, v1\ns_mov_b64 exec, 0xffff\nds_write_b32 v9, v8 offset:{L_H32+128}\ns_mov_b64 exec, -1")
    g("v_and_b32 v7, 15, v1\nv_min_u32 v7, 2, v7\nv_lshlrev_b32 v7, 6, v7\nv_lshrrev_b32 v8, 4, v1\nv_lshlrev_b32 v8, 4, v8\nv_add_u32 v7, v7, v8")
    g("v_bfe_u32 v8, v1, 3, 1\nv_mov_b32 v57, s62\nv_mov_b32 v9, s63\nv_cmp_eq_u32 vcc, 1, v8\ns_nop 1\nv_cndmask_b32 v57, v57, v9, vcc")
    g("v_and_b32 v5, 15, v1\nv_lshlrev_b32 v5, 6, v5\nv_lshrrev_b32 v8, 4, v1\nv_lshlrev_b32 v8, 4, v8\nv_add_u32 v5, v5, v8\nv_add_u32 v5, s55, v5")
    l = g.lab("ypoll")
    g(f"s_mov_b32 s60, 0\n{l}:")
    for t in range(8):
        g(f"global_load_dwordx4 v[{8+4*t}:{11+4*t}], v{3 if t < 4 else 4}, s[26:27] offset:{(t%4)*1024} sc1")
    g.spin_check("s60", o.spin)
    for t in range(8):
        g(f"s_waitcnt vmcnt({7-t})"); tagchk(g, 40, range(8+4*t, 12+4*t), t == 0)
        if t: g(f"v_pk_add_f32 v[8:9], v[8:9], v[{8+4*t}:{9+4*t}]\nv_pk_add_f32 v[10:11], v[10:11], v[{10+4*t}:{11+4*t}]")
    tagend(g, 40, l, 0)
    g.stamp(14)
    g.xswap(16, "v_add_f32", [8, 9, 10, 11], [12, 13, 14, 15])
    g.xswap(32, "v_add_f32", [8, 9, 10, 11], [12, 13, 14, 15])
    g("v_cvt_pk_bf16_f32 v12, v8, v9\nv_cvt_pk_bf16_f32 v13, v10, v11")
    g("v_lshlrev_b32 v8, 16, v12\nv_and_b32 v9, 0xffff0000, v12\nv_lshlrev_b32 v10, 16, v13\nv_and_b32 v11, 0xffff0000, v13")
    g("v_lshlrev_b32 v14, 16, v58\nv_and_b32 v15, 0xffff0000, v58\nv_lshlrev_b32 v16, 16, v59\nv_and_b32 v17, 0xffff0000, v59")
    g("v_pk_add_f32 v[8:9], v[8:9], v[14:15]\nv_pk_add_f32 v[10:11], v[10:11], v[16:17]")
    g("v_cvt_pk_bf16_f32 v12, v8, v9\nv_cvt_pk_bf16_f32 v13, v10, v11")
    g(f"ds_write_b64 v6, v[12:13] offset:{L_H32}")
    g("v_lshlrev_b32 v8, 16, v12\nv_and_b32 v9, 0xffff0000, v12\nv_lshlrev_b32 v10, 16, v13\nv_and_b32 v11, 0xffff0000, v13")
    for r in range(4): g(f"v_sub_f32 v{8+r}, v{8+r}, v57")
    g("s_waitcnt lgkmcnt(0)")
    g(f"ds_read_b128 v[20:23], v7 offset:{L_H32}")
    g("v_add_f32 v14, v8, v9\nv_add_f32 v16, v10, v11\nv_mul_f32 v15, v8, v8\nv_fmac_f32 v15, v9, v9\nv_add_f32 v14, v14, v16\nv_fmac_f32 v15, v10, v10\nv_fmac_f32 v15, v11, v11")
    for pat in ("quad_perm:[1,0,3,2]", "quad_perm:[2,3,0,1]", "row_half_mirror"):
        g.nop(1)
        for r in (14, 15): g(f"v_add_f32_dpp v{r}, v{r}, v{r} {pat} row_mask:0xf bank_mask:0xf")
    g("s_waitcnt lgkmcnt(0)")
    for half in range(2):
        for i in range(8):
            u = half * 8 + i
            r = 192 + u * 4
            g(f"v_mfma_f32_16x16x32_bf16 v[{24+4*i}:{27+4*i}], v[{r}:{r+3}], v[20:23], 0")
        if half == 0:
            g("v_mov_b32 v16, v14\nv_mov_b32 v17, v15")
            g.nop(1)
            g("v_mov_b32_dpp v18, v14 row_ror:8 row_mask:0xf bank_mask:0xf\nv_mov_b32_dpp v19, v15 row_ror:8 row_mask:0xf bank_mask:0xf")
        else:
            g.nop(4)
        g("s_mov_b32 exec_lo, 0x00070007\ns_mov_b32 exec_hi, 0x00070007")
        for i in range(8):
            if i == 7: g.nop(4)
            addtag(g, range(24+4*i, 28+4*i))
            g(f"global_store_dwordx4 v5, v[{24+4*i}:{27+4*i}], s[26:27] offset:{half*192} sc1")
            if i < 7: g("v_add_u32 v5, 8192, v5")
        g(f"v_subrev_u32 v5, {7*8192}, v5\ns_mov_b64 exec, -1")
    for r in range(4): g(f"v_readlane_b32 s{48+r}, v{16+r}, 0")
    g("v_lshlrev_b32 v8, 13, v1\nv_add_u32 v8, s55, v8")
    g.nop(1)
    for r in range(4): g(f"v_mov_b32 v{16+r}, s{48+r}")
    addtag(g, range(16, 20))
    g("s_mov_b64 exec, 0xff\nglobal_store_dwordx4 v8, v[16:19], s[26:27] offset:384 sc1\ns_mov_b64 exec, -1")
    g.stamp(15)
    g("s_cmp_lt_u32 s2, 64\ns_cbranch_scc1 L_f")
    g("s_cmp_ge_u32 s2, 144\ns_cbranch_scc0 L_fin")
    g("s_branch L_g2")
    g("L_g2pre:")
    if o.g2sleep: g(f"s_sleep {o.g2sleep}")
    g("L_g2:")
    g(f"s_sub_u32 s52, s2, 144\ns_lshl_b32 s53, s52, 13\ns_add_u32 s53, s53, {WS_GP}")
    g("v_lshrrev_b32 v3, 5, v1\nv_lshlrev_b32 v3, 9, v3\nv_and_b32 v4, 31, v1\nv_min_u32 v4, 24, v4\nv_lshlrev_b32 v4, 4, v4\nv_add_u32 v3, v3, v4\nv_add_u32 v3, s53, v3\nv_add_u32 v4, 4096, v3")
    g.masks(60, 8, True)
    g(f"s_lshl_b32 s52, s52, 6\ns_add_u32 s52, s52, {WS_DP}")
    g("v_lshrrev_b32 v5, 5, v1\nv_lshlrev_b32 v5, 5, v5\nv_bfe_u32 v6, v1, 1, 3\nv_add_u32 v5, v5, v6\nv_mul_u32_u24 v5, 7168, v5\nv_and_b32 v6, 1, v1\nv_lshlrev_b32 v6, 5, v6\nv_add_u32 v5, v5, v6\nv_bfe_u32 v6, v1, 4, 1\nv_lshlrev_b32 v6, 4, v6\nv_add_u32 v5, v5, v6\nv_add_u32 v5, s52, v5")
    g("v_and_b32 v6, 31, v1\nv_lshlrev_b32 v6, 4, v6")
    g("v_bfe_u32 v7, v1, 4, 1\nv_lshlrev_b32 v7, 6, v7\nv_and_b32 v57, 15, v1\nv_lshlrev_b32 v57, 2, v57\nv_add_u32 v7, v7, v57")
    g("v_bfe_u32 v58, v1, 3, 1\nv_lshlrev_b32 v58, 6, v58\nv_lshrrev_b32 v59, 4, v1\nv_lshlrev_b32 v59, 2, v59\nv_add_u32 v58, v58, v59")
    g("v_bfe_u32 v13, v1, 4, 1\nv_mov_b32 v59, s62\nv_mov_b32 v17, s63\nv_cmp_eq_u32 vcc, 1, v13\ns_nop 1\nv_cndmask_b32 v59, v59, v17, vcc")
    g("v_bfe_u32 v2, v1, 4, 1\nv_lshlrev_b32 v2, 3, v2")
    l = g.lab("gpoll")
    g(f"s_mov_b32 s60, 0\n{l}:")
    for t in range(8):
        g(f"global_load_dwordx4 v[{8+4*t}:{11+4*t}], v{3 if t < 4 else 4}, s[26:27] offset:{(t%4)*1024} sc1")
    g.spin_check("s60", o.spin)
    for t in range(8):
        g(f"s_waitcnt vmcnt({7-t})"); tagchk(g, 40, range(8+4*t, 12+4*t), t == 0)
        if t: g(f"v_pk_add_f32 v[8:9], v[8:9], v[{8+4*t}:{9+4*t}]\nv_pk_add_f32 v[10:11], v[10:11], v[{10+4*t}:{11+4*t}]")
    tagend(g, 40, l, 0)
    g.stamp(16)
    g.xswap(32, "v_add_f32", [8, 9, 10, 11], [12, 13, 14, 15])
    g(f"ds_write_b128 v6, v[8:11] offset:{L_G2}\ns_waitcnt lgkmcnt(0)")
    g(f"ds_read_b64 v[14:15], v2 offset:{L_G2+384}\nds_read_b32 v8, v7 offset:{L_G2}\nds_read_b32 v9, v57 offset:{L_G2+128}\nds_read_b32 v10, v7 offset:{L_G2+192}\nds_read_b32 v11, v57 offset:{L_G2+320}")
    for i in range(16): g(f"v_mov_b32 v{24+i}, 0")
    g("s_waitcnt lgkmcnt(4)")
    g("v_mul_f32 v14, 0x3b000000, v14\nv_mul_f32 v15, 0x3b000000, v15\nv_fma_f32 v15, -v14, v14, v15\nv_add_f32 v14, v14, v59\nv_add_f32 v15, 0x3727c5ac, v15\nv_rsq_f32 v15, v15")
    g("s_waitcnt lgkmcnt(0)")
    g("v_fma_f32 v8, -v14, v9, v8\nv_fma_f32 v10, -v14, v11, v10\nv_mul_f32 v8, v8, v15\nv_mul_f32 v10, v10, v15")
    g.bf16r(8, 8); g.bf16r(10, 10)
    g("v_mul_f32 v9, 0xbfb8aa3b, v8\nv_exp_f32 v9, v9"); g.nop(1)
    g("v_add_f32 v9, 1.0, v9\nv_rcp_f32 v9, v9"); g.nop(1)
    g("v_mul_f32 v9, v8, v9"); g.bf16r(9, 9)
    g("v_mul_f32 v9, v9, v10\nv_cvt_pk_bf16_f32 v9, v9, v9")
    g(f"s_mov_b32 exec_hi, 0\nds_write_b32 v7, v9 offset:{L_ACT}\ns_mov_b32 exec_hi, -1\ns_waitcnt lgkmcnt(0)")
    for t in range(4): g(f"ds_read_b32 v{8+t}, v58 offset:{L_ACT + t*16}")
    for t in range(4):
        g(f"s_waitcnt lgkmcnt({3-t})")
        for r in range(4): g(f"v_and_b32 v{40+4*t+r}, v{8+t}, v{60+r}")
    g.nop(2)
    for t in range(4):
        for cb4 in range(4):
            rb = 64 + (t * 4 + cb4) * 4
            g(f"v_mfma_f32_16x16x32_bf16 v[{24+4*cb4}:{27+4*cb4}], v[{40+4*t}:{43+4*t}], v[{rb}:{rb+3}], v[{24+4*cb4}:{27+4*cb4}]")
    g.nop(5)
    for cb4 in range(4):
        if cb4 == 3: g.nop(2)
        addtag(g, range(24+4*cb4, 28+4*cb4))
        g(f"global_store_dwordx4 v5, v[{24+4*cb4}:{27+4*cb4}], s[26:27] sc1")
        if cb4 < 3: g(f"v_add_u32 v5, {8*7168}, v5")
    g.stamp(17)
    g("s_branch L_fin")
    g("L_f:")
    g("s_lshr_b32 s52, s2, 5\ns_lshl_b32 s52, s52, 5\ns_and_b32 s53, s2, 15\ns_lshl_b32 s53, s53, 1\ns_add_u32 s52, s52, s53\ns_bfe_u32 s53, s2, 0x10004\ns_add_u32 s52, s52, s53")
    g(f"s_mul_i32 s53, s52, 7168\ns_add_u32 s53, s53, {WS_DP}\nv_lshlrev_b32 v3, 4, v1\nv_add_u32 v3, s53, v3\nv_add_u32 v4, 4096, v3")
    g(f"s_lshr_b32 s53, s2, 5\ns_lshl_b32 s53, s53, 6\ns_bfe_u32 s54, s2, 0x10004\ns_lshl_b32 s54, s54, 5\ns_add_u32 s53, s53, s54\nv_and_b32 v6, 3, v1\nv_lshlrev_b32 v6, 3, v6\nv_add_u32 v7, s53, v6\nds_read_b64 v[58:59], v7 offset:{L_H32}")
    g("s_lshl_b32 s53, s52, 5\nv_add_u32 v6, s53, v6")
    if o.fsleep: g(f"s_sleep {o.fsleep}")
    l = g.lab("fpoll")
    g(f"s_mov_b32 s60, 0\n{l}:")
    for t in range(7):
        g(f"global_load_dwordx4 v[{8+4*t}:{11+4*t}], v{3 if t < 4 else 4}, s[26:27] offset:{(t%4)*1024} sc1")
    g.spin_check("s60", o.spin)
    for t in range(7):
        g(f"s_waitcnt vmcnt({6-t})"); tagchk(g, 40, range(8+4*t, 12+4*t), t == 0)
        if t: g(f"v_pk_add_f32 v[8:9], v[8:9], v[{8+4*t}:{9+4*t}]\nv_pk_add_f32 v[10:11], v[10:11], v[{10+4*t}:{11+4*t}]")
    tagend(g, 40, l, 0)
    g.stamp(18)
    for sh in (4, 8):
        g.nop(1)
        for r in range(4): g(f"v_add_f32_dpp v{8+r}, v{8+r}, v{8+r} row_ror:{sh} row_mask:0xf bank_mask:0xf")
    g.xswap(16, "v_add_f32", [8, 9, 10, 11], [12, 13, 14, 15])
    g.xswap(32, "v_add_f32", [8, 9, 10, 11], [12, 13, 14, 15])
    g("v_cvt_pk_bf16_f32 v12, v8, v9\nv_cvt_pk_bf16_f32 v13, v10, v11")
    g("v_lshlrev_b32 v8, 16, v12\nv_and_b32 v9, 0xffff0000, v12\nv_lshlrev_b32 v10, 16, v13\nv_and_b32 v11, 0xffff0000, v13")
    g("s_waitcnt lgkmcnt(0)")
    g("v_lshlrev_b32 v14, 16, v58\nv_and_b32 v15, 0xffff0000, v58\nv_lshlrev_b32 v16, 16, v59\nv_and_b32 v17, 0xffff0000, v59")
    g("v_pk_add_f32 v[8:9], v[8:9], v[14:15]\nv_pk_add_f32 v[10:11], v[10:11], v[16:17]")
    g("v_cvt_pk_bf16_f32 v12, v8, v9\nv_cvt_pk_bf16_f32 v13, v10, v11")
    g("s_mov_b64 exec, 0xf\nglobal_store_dwordx2 v6, v[12:13], s[22:23]\ns_mov_b64 exec, -1")
    l1 = g.lab("noep")
    g(f"s_cmp_eq_u32 s2, 0\ns_cbranch_scc0 {l1}\nv_mov_b32 v8, 0\nv_mov_b32 v9, s58\ns_mov_b64 exec, 1\nglobal_store_dword v8, v9, s[26:27] offset:{WS_EPOCH}\ns_mov_b64 exec, -1\n{l1}:")
    g.stamp(19)
    g("L_fin:")
    g.dump_stamps()
    g("L_end:\ns_endpgm")

def gen(o):
    g = G(o)
    g("s_cmp_ge_u32 s2, 256\ns_cbranch_scc1 L_exit")
    g("s_load_dwordx16 s[4:19], s[0:1], 0\ns_load_dwordx8 s[20:27], s[0:1], 64")
    g("v_lshrrev_b32 v1, 6, v0\ns_nop 0\nv_readfirstlane_b32 s3, v1\nv_and_b32 v1, 63, v0")
    g("s_and_b32 s28, s2, 7\ns_lshl_b32 s28, s28, 2\ns_bfe_u32 s29, s2, 0x20003\ns_add_u32 s28, s28, s29")
    g("s_lshr_b32 s29, s2, 5\ns_and_b32 s30, s29, 1\ns_lshr_b32 s31, s29, 1")
    if o.stamps: g("v_mov_b32 v0, 0")
    g("s_waitcnt lgkmcnt(0)")
    g("s_cmp_lt_u32 s3, 4\ns_cbranch_scc0 L_tail")
    schedule_stream(g, o)
    g("L_exit:\ns_endpgm")
    tail(g, o)
    return wrap(g.text(), 256, 320, L_END, vgpr=256, sgpr=(102 if o.stamps else 64))

def parse(argv=None):
    ap = argparse.ArgumentParser()
    ap.add_argument("-o", default="k3.s")
    ap.add_argument("--R", type=int, default=5)
    ap.add_argument("--Rt", type=int, default=2)
    ap.add_argument("--stamps", type=int, default=0)
    ap.add_argument("--mimic", type=int, default=1)
    ap.add_argument("--spin", type=int, default=100000)
    ap.add_argument("--hint_tile", type=int, default=29)
    ap.add_argument("--gsleep", type=int, default=2)
    ap.add_argument("--fsleep", type=int, default=0)
    ap.add_argument("--dbg_notail", type=int, default=0)
    ap.add_argument("--dbg_nok", type=int, default=0)
    ap.add_argument("--dbg_nov", type=int, default=0)
    ap.add_argument("--dbg_noq", type=int, default=0)
    ap.add_argument("--mlsleep", type=int, default=8)
    ap.add_argument("--mlsleep2", type=int, default=32)
    ap.add_argument("--qsleep", type=int, default=16)
    ap.add_argument("--qsleep2", type=int, default=4)
    ap.add_argument("--g2sleep", type=int, default=16)
    ap.add_argument("--agate", type=int, default=1)
    ap.add_argument("--ggate", type=int, default=1)
    ap.add_argument("--hintsleep", type=int, default=4)
    ap.add_argument("--dbg_skip", type=str, default="")
    ap.add_argument("--dbg_endb3", type=int, default=0)
    return ap.parse_args(argv)
if __name__ == "__main__":
    o = parse()
    open(o.o, "w").write(gen(o))
    print("wrote", o.o)
```

```python
import sys, argparse
from asmlib import *

LOG2E = 0x3fb8aa3b
WS_EPOCH = 0x0
WS_ML  = 0x1000
WS_HF  = 0x4000
WS_RF  = 0x6000
WS_QP  = 0x20000
WS_O   = 0x40000
WS_Y2  = 0x60000
WS_GP  = 0x80000
WS_CS  = 0x100000
WS_ST  = 0x7000
WS_DP  = 0x180000
L_QF   = 0
L_MLW  = 256
L_HINT = 320
L_FW   = 328
L_XN   = 512
L_OACC = 2560
L_OB   = 4608
L_H32  = 5120
L_G2   = 5376
L_ACT  = 5888
L_IMG  = 8192
L_WD   = 24576
L_END  = 98304

class G(Asm):
    def __init__(s, opt):
        super().__init__(); s.o = opt; s.nlab = 0; s.light = {0, 5}
    def lab(s, base):
        s.nlab += 1; return f"L_{base}_{s.nlab}"
    def nop(s, n):
        while n > 0:
            k = min(n, 16); s(f"s_nop {k-1}"); n -= k
    def stamp(s, idx):
        if not s.o.stamps: return
        if s.o.stamps == 2 and idx not in s.light: return
        s(f"s_memrealtime s[64:65]\ns_waitcnt lgkmcnt(0)\nv_writelane_b32 v0, s64, {idx}")
    def dump_stamps(s, n=0):
        if not s.o.stamps: return
        s("s_getreg_b32 s64, hwreg(HW_REG_XCC_ID)\ns_add_u32 s64, s64, 1\nv_writelane_b32 v0, s64, 31")
        s("s_add_u32 s96, s26, 0x10000000\ns_addc_u32 s97, s27, 0")
        s("s_lshl_b32 s98, s2, 3\ns_add_u32 s98, s98, s3\ns_lshl_b32 s98, s98, 7\ns_add_u32 s96, s96, s98\ns_addc_u32 s97, s97, 0")
        s("v_lshlrev_b32 v2, 2, v1\ns_mov_b32 exec_lo, -1\ns_mov_b32 exec_hi, 0\nglobal_store_dword v2, v0, s[96:97]\ns_mov_b64 exec, -1")
    def row_allreduce(s, op, regs, shifts=(8, 4, 2, 1)):
        for sh in shifts:
            s.nop(2 if len(regs) < 3 else 0)
            for r in regs: s(f"{op}_dpp v{r}, v{r}, v{r} row_ror:{sh} row_mask:0xf bank_mask:0xf")
    def xswap(s, which, op, regs, temps):
        for r, t in zip(regs, temps): s(f"v_mov_b32 v{t}, v{r}")
        s.nop(2)
        for r, t in zip(regs, temps): s(f"v_permlane{which}_swap_b32 v{r}, v{t}")
        s.nop(1)
        for r, t in zip(regs, temps): s(f"{op} v{r}, v{r}, v{t}")
    def bf16r(s, d, src):
        s(f"v_cvt_pk_bf16_f32 v{d}, v{src}, v{src}\nv_and_b32 v{d}, 0xffff0000, v{d}")
    def spin_check(s, cnt, limit):
        s(f"s_add_u32 {cnt}, {cnt}, 1\ns_cmp_gt_u32 {cnt}, {limit}\ns_cbranch_scc1 L_end")

    def layernorm(s, src, F, T, va):
        for i in range(8):
            s(f"v_lshlrev_b32 v{F+2*i}, 16, v{src+i}\nv_and_b32 v{F+2*i+1}, 0xffff0000, v{src+i}")
        S = T
        s(f"v_pk_add_f32 v[{T}:{T+1}], v[{F}:{F+1}], v[{F+2}:{F+3}]")
        for i in range(2, 8): s(f"v_pk_add_f32 v[{T}:{T+1}], v[{T}:{T+1}], v[{F+2*i}:{F+2*i+1}]")
        s(f"v_add_f32 v{S}, v{T}, v{T+1}")
        s.row_allreduce("v_add_f32", [S]); s.xswap(16, "v_add_f32", [S], [T+1])
        Mn = T+2
        s(f"v_mul_f32 v{Mn}, 0x3b000000, v{S}")
        s(f"v_mov_b32 v{Mn+1}, v{Mn}")
        s(f"v_readlane_b32 s62, v{Mn}, 0\nv_readlane_b32 s63, v{Mn}, 32")
        C = T+4
        s(f"v_mov_b32 v{T}, 0\nv_mov_b32 v{T+1}, 0")
        for i in range(8):
            s(f"v_pk_add_f32 v[{C}:{C+1}], v[{F+2*i}:{F+2*i+1}], v[{Mn}:{Mn+1}] neg_lo:[0,1] neg_hi:[0,1]")
            s(f"v_pk_fma_f32 v[{T}:{T+1}], v[{C}:{C+1}], v[{C}:{C+1}], v[{T}:{T+1}]")
        s(f"v_add_f32 v{S}, v{T}, v{T+1}")
        s.row_allreduce("v_add_f32", [S]); s.xswap(16, "v_add_f32", [S], [T+1])
        s(f"v_mul_f32 v{S}, 0x3b000000, v{S}")
        s.bf16r(S, S)
        s(f"v_add_f32 v{S}, 0x3727c5ac, v{S}")
        s.bf16r(S, S)
        s(f"v_sqrt_f32 v{S}, v{S}"); s.nop(1)
        s.bf16r(S, S)
        s(f"v_rcp_f32 v{S}, v{S}")
        s.bf16r(Mn, Mn); s(f"v_mov_b32 v{Mn+1}, v{Mn}\nv_mov_b32 v{S+1}, v{S}")
        for i in range(8):
            s(f"v_pk_add_f32 v[{C}:{C+1}], v[{F+2*i}:{F+2*i+1}], v[{Mn}:{Mn+1}] neg_lo:[0,1] neg_hi:[0,1]")
            s(f"v_cvt_pk_bf16_f32 v{C}, v{C}, v{C+1}")
            s(f"v_and_b32 v{C+1}, 0xffff0000, v{C}\nv_lshlrev_b32 v{C}, 16, v{C}")
            s(f"v_pk_mul_f32 v[{C}:{C+1}], v[{C}:{C+1}], v[{S}:{S+1}]")
            s(f"v_cvt_pk_bf16_f32 v{F+i}, v{C}, v{C+1}")
        s(f"ds_write_b128 v{va}, v[{F}:{F+3}] offset:{L_XN}\nds_write_b128 v{va}, v[{F+4}:{F+7}] offset:{L_XN+16}")

    def masks(s, MK, T, two_batch):
        s(f"v_and_b32 v{T}, {7 if two_batch else 15}, v1")
        for r in range(4):
            s(f"v_lshrrev_b32 v{T+1}, 1, v{T}\nv_cmp_eq_u32 vcc, {r}, v{T+1}\nv_and_b32 v{T+2}, 1, v{T}\nv_cmp_eq_u32 s[46:47], 1, v{T+2}")
            s(f"v_mov_b32 v{T+3}, 0xffff\nv_mov_b32 v{T+4}, 0xffff0000\nv_cndmask_b32 v{T+3}, v{T+3}, v{T+4}, s[46:47]\nv_cndmask_b32 v{MK+r}, 0, v{T+3}, vcc")

def schedule_stream(g, o):
    R, RING = o.R, 32
    Rpat = [int(x) for x in o.Rpat.split(",")] if o.Rpat else [R]
    R = max(Rpat)
    RB, SB = 128, 64
    Q, ACC, MK, A0 = 8, 12, 16, 20
    a0, x, y = 28, 32, 33
    MX, TMP = 34, 35
    LS, FF, PP = 42, 43, 44
    VOFF = 2
    N = 256
    st = dict(i=0, c=0, arrived=-1)
    cur = {0: None, 1: None}
    def slot(j): return RB + 4 * (j % RING)
    def wait_arrived(j):
        if st['arrived'] >= j: return
        g(f"s_waitcnt vmcnt({st['i'] - 1 - j})"); st['arrived'] = j
    def issue():
        j = st['i']
        assert j - 4 * st['c'] < RING, (j, st)
        Rj = Rpat[j % len(Rpat)]
        if o.Rv and j >= 128 + 8: Rj = o.Rv
        if o.Rend and j >= 128 + 4 * o.Rendtile: Rj = o.Rend
        if j >= Rj: wait_arrived(j - Rj)
        kv = 0 if j < 128 else 1
        t = (j % 128) // 4
        if cur[kv] != t:
            g(f"s_mov_b32 s{44+kv}, {t * 16384}"); cur[kv] = t
        srd = "s[36:39]" if kv == 0 else "s[40:43]"
        r = slot(j)
        g(f"buffer_load_dwordx4 v[{r}:{r+3}], v{VOFF}, {srd}, s{44+kv} offen offset:{(j % 4) * 1024} {o.kpol if kv == 0 else o.vpol}")
        st['i'] += 1
    def can_issue(): return st['i'] - 4 * st['c'] < RING and st['i'] < N
    def consume_k(t, n_issue):
        base = 4 * t
        wait_arrived(base + 3)
        rs = [slot(base + u) for u in range(4)]
        if o.dbg_nok:
            st['c'] += 1
            g(f"v_mov_b32 v{SB+t}, 0")
            for _ in range(n_issue):
                if can_issue(): issue()
            return
        for u in range(4): g(f"v_dot2_f32_bf16 v{a0+u}, v{rs[u]}, v{Q}, 0")
        for k in range(1, 4):
            for u in range(4): g(f"v_dot2c_f32_bf16 v{a0+u}, v{rs[u]+k}, v{Q+k}")
        st['c'] += 1
        pend = [n_issue]
        def maybe(nw):
            if pend[0] > 0 and can_issue():
                issue(); pend[0] -= 1
            g.nop(nw)
        maybe(1)
        g(f"v_add_f32_dpp v{x}, v{a0}, v{a0} row_ror:8 row_mask:0xf bank_mask:0x3")
        g(f"v_add_f32_dpp v{x}, v{a0+1}, v{a0+1} row_ror:8 row_mask:0xf bank_mask:0xc")
        g(f"v_add_f32_dpp v{y}, v{a0+2}, v{a0+2} row_ror:8 row_mask:0xf bank_mask:0x3")
        g(f"v_add_f32_dpp v{y}, v{a0+3}, v{a0+3} row_ror:8 row_mask:0xf bank_mask:0xc")
        maybe(1)
        S = SB + t
        g(f"v_add_f32_dpp v{S}, v{x}, v{x} row_shl:4 row_mask:0xf bank_mask:0x5")
        g(f"v_add_f32_dpp v{S}, v{y}, v{y} row_shr:4 row_mask:0xf bank_mask:0xa")
        maybe(2)
        g(f"v_add_f32_dpp v{S}, v{S}, v{S} quad_perm:[1,0,3,2] row_mask:0xf bank_mask:0xf")
        maybe(2)
        g(f"v_add_f32_dpp v{S}, v{S}, v{S} quad_perm:[2,3,0,1] row_mask:0xf bank_mask:0xf")
        if o.mimic:
            g.bf16r(S, S); g(f"v_mul_f32 v{S}, 0x3db504f3, v{S}"); g.bf16r(S, S)
        else:
            g(f"v_mul_f32 v{S}, 0x3db504f3, v{S}")
        g(f"v_max_f32 v{MX}, v{MX}, v{S}")
        while pend[0] > 0 and can_issue(): issue(); pend[0] -= 1
    def consume_v(t, n_issue):
        base = 128 + 4 * t
        S = SB + t
        g(f"v_cvt_pk_bf16_f32 v{PP}, v{S}, v{S}")
        wait_arrived(base + 3)
        if o.dbg_nov:
            st['c'] += 1
            for _ in range(n_issue):
                if can_issue(): issue()
            return
        g.nop(2)
        bank = [0, 2, 1, 3]
        for u in range(4):
            A = A0 + 4 * (u & 1)
            for r in range(4): g(f"v_and_b32_dpp v{A+r}, v{PP}, v{MK+r} row_newbcast:{4*bank[u]} row_mask:0xf bank_mask:0xf")
            g.nop(2)
            rv = slot(base + u)
            g(f"v_mfma_f32_16x16x32_bf16 v[{ACC}:{ACC+3}], v[{A}:{A+3}], v[{rv}:{rv+3}], v[{ACC}:{ACC+3}]")
        st['c'] += 1
        for _ in range(n_issue):
            if can_issue(): issue()

    g("s_lshl_b32 s32, s30, 5\ns_add_u32 s32, s32, s28\ns_lshl_b32 s32, s32, 21\ns_lshl_b32 s33, s31, 19\ns_add_u32 s32, s32, s33")
    g("s_add_u32 s36, s6, s32\ns_addc_u32 s37, s7, 0\ns_and_b32 s37, s37, 0xffff\ns_mov_b32 s38, 0x80000\ns_mov_b32 s39, 0x20000")
    g("s_add_u32 s40, s8, s32\ns_addc_u32 s41, s9, 0\ns_and_b32 s41, s41, 0xffff\ns_mov_b32 s42, 0x80000\ns_mov_b32 s43, 0x20000")
    g(f"s_lshl_b32 s33, s3, 12\nv_lshlrev_b32 v{VOFF}, 4, v1\nv_add_u32 v{VOFF}, s33, v{VOFF}")
    g.stamp(0)
    for _ in range(min(Rpat)): issue()
    g.masks(MK, TMP, False)
    for r in range(4): g(f"v_mov_b32 v{ACC+r}, 0")
    g(f"v_mov_b32 v{MX}, 0xff800000")
    while st['i'] < RING: issue()
    g.stamp(1)
    g("s_barrier")
    g.stamp(2)
    g(f"v_and_b32 v{TMP}, 15, v1\nv_lshlrev_b32 v{TMP}, 4, v{TMP}\nds_read_b128 v[{Q}:{Q+3}], v{TMP} offset:{L_QF}\ns_waitcnt lgkmcnt(0)")
    GAP = R + 3
    while st['c'] < 32:
        gap_after = st['i'] - 4 * (st['c'] + 1)
        consume_k(st['c'], 1 if gap_after > GAP else 4)
    g.stamp(3)
    g.row_allreduce("v_max_f32", [MX]); g.xswap(16, "v_max_f32", [MX], [TMP]); g.xswap(32, "v_max_f32", [MX], [TMP])
    MC = TMP + 1
    g(f"v_mul_f32 v{MC}, {hex(LOG2E)}, v{MX}\nv_mov_b32 v{TMP+2}, {hex(LOG2E)}\nv_mov_b32 v{LS}, 0")
    for t in range(32):
        S = SB + t
        g(f"v_fma_f32 v{S}, v{S}, v{TMP+2}, -v{MC}\nv_exp_f32 v{S}, v{S}")
        if t > 0: g(f"v_add_f32 v{LS}, v{LS}, v{SB+t-1}")
        if t % 8 == 3 and can_issue() and st['i'] - 4 * st['c'] < GAP + 4: issue()
    g.nop(1); g(f"v_add_f32 v{LS}, v{LS}, v{SB+31}")
    g.row_allreduce("v_add_f32", [LS]); g.xswap(16, "v_add_f32", [LS], [TMP]); g.xswap(32, "v_add_f32", [LS], [TMP])
    g(f"v_mul_f32 v{LS}, 0x3e800000, v{LS}")
    P2 = 46
    g(f"v_mov_b32 v{P2}, v{MX}\nv_mov_b32 v{P2+1}, v{LS}")
    g(f"s_lshl_b32 s33, s3, 3\nv_mov_b32 v{TMP}, s33\ns_mov_b64 exec, 1\nds_write_b64 v{TMP}, v[{P2}:{P2+1}] offset:{L_MLW}\ns_mov_b64 exec, -1")
    g.stamp(4)
    while st['c'] < 64:
        t = st['c'] - 32
        gap_after = st['i'] - 4 * (st['c'] + 1)
        gp = GAP if not (o.Rend and st['i'] >= 128 + 4 * o.Rendtile - 4) else o.Rend + 3
        consume_v(t, 1 if gap_after > gp else (4 if gap_after > gp - 4 else 6))
        if t == o.hint_tile:
            g(f"v_mov_b32 v{TMP}, 0\nv_mov_b32 v{TMP+1}, 1\ns_mov_b64 exec, 1\nds_write_b32 v{TMP}, v{TMP+1} offset:{L_HINT}\ns_mov_b64 exec, -1")
            if "ml" in o.dbg_skip: continue
            lf = g.lab("fw")
            g(f"s_lshl_b32 s33, s3, 2\nv_mov_b32 v{TMP}, s33\ns_mov_b32 s48, 0\n{lf}:\nds_read_b32 v{FF}, v{TMP} offset:{L_FW}\ns_waitcnt lgkmcnt(0)\nv_cmp_u_f32 vcc, v{FF}, v{FF}")
            g(f"s_add_u32 s48, s48, 1\ns_cmp_gt_u32 s48, {o.spin * 20}\ns_cbranch_scc1 L_end\ns_cbranch_vccnz {lf}")
    g.stamp(5)
    g(f"v_and_b32 v{TMP}, 15, v1\nv_lshlrev_b32 v{TMP}, 5, v{TMP}\nv_lshrrev_b32 v{TMP+1}, 4, v1\nv_lshlrev_b32 v{TMP+1}, 4, v{TMP+1}\nv_add_u32 v{TMP}, v{TMP}, v{TMP+1}")
    g(f"s_lshl_b32 s33, s3, 9\nv_add_u32 v{TMP}, s33, v{TMP}")
    g.nop(4)
    for r in range(4): g(f"v_mul_f32 v{ACC+r}, v{FF}, v{ACC+r}")
    g(f"s_mov_b32 exec_hi, 0\nds_write_b128 v{TMP}, v[{ACC}:{ACC+3}] offset:{L_OACC}\ns_waitcnt lgkmcnt(0)\ns_mov_b32 exec_hi, -1")
    g("s_barrier")
    g.stamp(6)
    g.dump_stamps(7)
    g("s_endpgm")

def tagchk(g, acc, regs, first):
    for i, r in enumerate(regs):
        if first and i == 0: g(f"v_xor_b32 v{acc}, s59, v{r}")
        else: g(f"v_bitop3_b32 v{acc}, v{acc}, v{r}, s59 bitop3:0xf6")
def tagend(g, acc, loop, sleep=0):
    g(f"v_and_b32 v{acc}, {hex((1 << g.o.tagbits) - 1)}, v{acc}\nv_cmp_ne_u32 vcc, 0, v{acc}")
    if sleep:
        l = g.lab("tok")
        g(f"s_cbranch_vccz {l}\ns_sleep {sleep}\ns_branch {loop}\n{l}:")
    else:
        g.nop(1); g(f"s_cbranch_vccnz {loop}")
def addtag(g, regs):
    for r in regs: g(f"v_and_or_b32 v{r}, v{r}, s61, v54")

def dma_tile(g, o, n, vaddr, srd, m0_of, soff_of, R_t):
    for t in range(n):
        if t >= R_t: g(f"s_waitcnt vmcnt({R_t-1})")
        g(f"s_mov_b32 m0, {m0_of(t)}\ns_mov_b32 s54, {soff_of(t)}")
        g(f"buffer_load_dwordx4 v{vaddr}, {srd}, s54 offen nt lds")
    g("s_waitcnt vmcnt(0)")

def tr_tile128(g, va, base):
    n = 0
    for cb in range(4):
        for kb in range(4):
            r = base + (cb * 4 + kb) * 4
            g(f"ds_read_b64_tr_b16 v[{r}:{r+1}], v{va} offset:{kb*4096 + cb*32}\nds_read_b64_tr_b16 v[{r+2}:{r+3}], v{va} offset:{kb*4096 + cb*32 + 512}")
            n += 2
            if n % 8 == 0: g("s_waitcnt lgkmcnt(0)")

def gate(g, o, name, addr_sgpr_expr, sleep):
    l = g.lab(name)
    g(f"v_and_b32 v8, 7, v1\nv_lshlrev_b32 v8, 2, v8\nv_add_u32 v8, s52, v8\ns_mov_b32 s60, 0\n{l}:\nglobal_load_dword v9, v8, s[26:27] sc1\ns_waitcnt vmcnt(0)\nv_cmp_ne_u32 vcc, s58, v9")
    g.spin_check("s60", o.spin)
    g(f"s_cbranch_vccz {l}_ok")
    if sleep: g(f"s_sleep {sleep}")
    g(f"s_branch {l}\n{l}_ok:")


TAG = 54
def tag1(g, r): g(f"v_and_or_b32 v{r}, v{r}, s61, v{TAG}")
def poll(g, o, name, n, load, chk, accum, presleep=0, retry=0, mask="0xff", tagsgpr="s59"):
    if presleep: g(f"s_sleep {presleep}")
    l = g.lab(name)
    g(f"s_mov_b32 s60, 0\n{l}:")
    for t in range(n): load(t)
    g.spin_check("s60", o.spin)
    first = True
    for t in range(n):
        g(f"s_waitcnt vmcnt({n-1-t})")
        for r in chk(t):
            if first: g(f"v_xor_b32 v47, {tagsgpr}, v{r}"); first = False
            else: g(f"v_bitop3_b32 v47, v47, v{r}, {tagsgpr} bitop3:0xf6")
        accum(t)
    g(f"v_and_b32 v47, {mask}, v47\nv_cmp_ne_u32 vcc, 0, v47")
    if retry:
        g(f"s_cbranch_vccz {l}_ok\ns_sleep {retry}\ns_branch {l}\n{l}_ok:")
    else:
        g.nop(1); g(f"s_cbranch_vccnz {l}")
    sl = {"gpoll": 21, "fpoll": 23, "ypoll": 25, "opoll": 27}.get(name)
    if sl and o.stamps == 1: g(f"v_writelane_b32 v0, s60, {sl}")

def ld4(g, base, addr):
    def f(t):
        va, off = addr(t)
        g(f"global_load_dwordx4 v[{base+4*t}:{base+4*t+3}], v{va}, s[26:27] offset:{off} sc1")
    return f
def sum4(g, dst, base):
    def a(t):
        if t == 0: return
        if t == 1: g(f"v_pk_add_f32 v[{dst}:{dst+1}], v[{base}:{base+1}], v[{base+4}:{base+5}]\nv_pk_add_f32 v[{dst+2}:{dst+3}], v[{base+2}:{base+3}], v[{base+6}:{base+7}]")
        else: g(f"v_pk_add_f32 v[{dst}:{dst+1}], v[{dst}:{dst+1}], v[{base+4*t}:{base+4*t+1}]\nv_pk_add_f32 v[{dst+2}:{dst+3}], v[{dst+2}:{dst+3}], v[{base+4*t+2}:{base+4*t+3}]")
    return a
def red4(g, r):
    g.nop(2)
    g(f"v_permlane16_swap_b32 v{r}, v{r+1}\nv_permlane16_swap_b32 v{r+2}, v{r+3}")
    g.nop(1)
    g(f"v_add_f32 v{r}, v{r}, v{r+1}\nv_add_f32 v{r+2}, v{r+2}, v{r+3}")
    g.nop(2)
    g(f"v_permlane32_swap_b32 v{r}, v{r+2}")
    g.nop(1)
    g(f"v_add_f32 v{r}, v{r}, v{r+2}")

def g1_addrs(g):
    g("v_and_b32 v32, 1, v1\nv_lshlrev_b32 v32, 6, v32\nv_lshrrev_b32 v33, 4, v1\nv_lshlrev_b32 v33, 4, v33\nv_add_u32 v32, v32, v33\nv_add_u32 v33, 128, v33\nv_bfe_u32 v34, v1, 1, 3")
    for u in range(8):
        g(f"v_cmp_eq_u32 vcc, {u}, v34\ns_nop 1\nv_cndmask_b32 v{24+u}, v33, v32, vcc")

def gate(g, o, name, sleep):
    l = g.lab(name)
    g(f"v_and_b32 v8, 7, v1\nv_lshlrev_b32 v8, 2, v8\nv_add_u32 v8, s52, v8\ns_mov_b32 s60, 0\n{l}:\nglobal_load_dword v9, v8, s[26:27] sc1\ns_waitcnt vmcnt(0)\nv_cmp_ne_u32 vcc, s58, v9")
    g.spin_check("s60", o.spin)
    g(f"s_cbranch_vccz {l}_ok")
    if sleep: g(f"s_sleep {sleep}")
    g(f"s_branch {l}\n{l}_ok:")

def tail(g, o):
    g("L_tail:")
    g.light = {0, 11, 19}
    g.stamp(0)
    if o.dbg_noq:
        g("s_barrier\ns_barrier")
        g.stamp(11)
        g("s_branch L_fin")
    g(f"s_load_dword s58, s[26:27], {WS_EPOCH}")
    if o.cpf0:
        KL = KN + "_kernel"
        g(f"s_getpc_b64 s[56:57]\nL_cpf0:\ns_sub_u32 s56, s56, L_cpf0-{KL}\ns_subb_u32 s57, s57, 0\ns_lshr_b32 s52, s2, 3\ns_lshl_b32 s52, s52, 10")
        g(f"v_lshlrev_b32 v8, 7, v1\nv_add_u32 v8, s52, v8\nv_min_u32 v9, L_end-{KL}, v8\ns_mov_b64 exec, 0xff\nglobal_load_dword v96, v9, s[56:57]\ns_mov_b64 exec, -1")
    for r in range(48, 64): g(f"v_mov_b32 v{r}, 0")
    g("s_mov_b32 s55, 0")
    g("v_lshrrev_b32 v2, 5, v1\nv_lshlrev_b32 v2, 10, v2\nv_and_b32 v3, 31, v1\nv_lshlrev_b32 v3, 5, v3\nv_add_u32 v2, v2, v3")
    g("global_load_dwordx4 v[8:11], v2, s[4:5] nt\nglobal_load_dwordx4 v[12:15], v2, s[4:5] offset:16 nt")
    g("s_mov_b32 s48, s10\ns_and_b32 s49, s11, 0xffff\ns_mov_b32 s50, 0x400000\ns_mov_b32 s51, 0x20000")
    g("s_lshl_b32 s52, s28, 8\ns_lshl_b32 s53, s30, 7\ns_add_u32 s52, s52, s53\ns_lshl_b32 s53, s31, 20\ns_add_u32 s52, s52, s53")
    g("v_lshrrev_b32 v4, 3, v1\nv_lshlrev_b32 v4, 13, v4\nv_and_b32 v5, 7, v1\nv_lshlrev_b32 v5, 4, v5\nv_add_u32 v4, v4, v5\nv_add_u32 v4, s52, v4")
    for t in range(16):
        g(f"s_mov_b32 m0, {L_IMG + t*1024}\ns_mov_b32 s54, {t * 8 * 8192}")
        g("buffer_load_dwordx4 v4, s[48:51], s54 offen nt lds")
    g(f"v_mov_b32 v20, -1\nv_lshlrev_b32 v21, 2, v1\ns_mov_b64 exec, 0xff\nds_write_b32 v21, v20 offset:{L_MLW}\ns_mov_b64 exec, 0xf\nds_write_b32 v21, v20 offset:{L_FW}\ns_mov_b64 exec, 1\nv_mov_b32 v20, 0\nds_write_b32 v21, v20 offset:{L_HINT}\ns_mov_b64 exec, -1")
    g(f"v_lshrrev_b32 v5, 4, v1\nv_lshlrev_b32 v5, 3, v5\nv_bfe_u32 v6, v1, 2, 2\nv_add_u32 v5, v5, v6\nv_lshlrev_b32 v5, 7, v5\nv_and_b32 v6, 3, v1\nv_lshlrev_b32 v6, 3, v6\nv_add_u32 v5, v5, v6\nv_add_u32 v5, {L_IMG}, v5")
    g("s_waitcnt vmcnt(16) lgkmcnt(0)")
    g.stamp(1)
    g(f"s_add_u32 s58, s58, 1\ns_and_b32 s59, s58, 0xff\ns_mov_b32 s61, 0xffffff00\nv_mov_b32 v{TAG}, s59\ns_and_b32 s56, s58, 0xf\ns_mov_b32 s57, 0xfffffff0\nv_mov_b32 v53, s56")
    g.layernorm(8, 16, 32, 2)
    g("v_and_b32 v6, 1, v1\nv_lshlrev_b32 v6, 10, v6\nv_lshrrev_b32 v7, 4, v1\nv_lshlrev_b32 v7, 4, v7\nv_add_u32 v6, v6, v7\ns_lshl_b32 s52, s31, 8\nv_add_u32 v6, s52, v6")
    g("s_waitcnt lgkmcnt(0)")
    for kb in range(4): g(f"ds_read_b128 v[{8+4*kb}:{11+4*kb}], v6 offset:{L_XN + kb*64}")
    g("s_waitcnt vmcnt(0)")
    g.stamp(2)
    tr_tile128(g, 5, 128)
    for i in range(16): g(f"v_mov_b32 v{24+i}, 0")
    g("s_waitcnt lgkmcnt(0)")
    for kb in range(4):
        for cb in range(4):
            r = 128 + (cb * 4 + kb) * 4
            g(f"v_mfma_f32_16x16x32_bf16 v[{24+4*cb}:{27+4*cb}], v[{r}:{r+3}], v[{8+4*kb}:{11+4*kb}], v[{24+4*cb}:{27+4*cb}]")
    g("s_lshl_b32 s52, s28, 12\ns_lshl_b32 s53, s31, 9\ns_add_u32 s52, s52, s53\ns_lshl_b32 s53, s30, 8\ns_add_u32 s52, s52, s53")
    g(f"s_add_u32 s52, s52, {WS_QP}\nv_and_b32 v7, 1, v1\nv_lshlrev_b32 v7, 11, v7\nv_lshrrev_b32 v6, 4, v1\nv_lshlrev_b32 v6, 4, v6\nv_add_u32 v7, v7, v6\nv_add_u32 v7, s52, v7")
    g.nop(2)
    for r in range(24, 40): g(f"v_and_or_b32 v{r}, v{r}, s57, v53")
    g("s_mov_b32 exec_lo, 0x00030003\ns_mov_b32 exec_hi, 0x00030003")
    for cb in range(4): g(f"global_store_dwordx4 v7, v[{24+4*cb}:{27+4*cb}], s[26:27] offset:{cb*64} sc1")
    g("s_mov_b64 exec, -1")
    g.stamp(3)
    g(f"s_lshl_b32 s52, s28, 12\ns_lshl_b32 s53, s30, 11\ns_add_u32 s52, s52, s53\ns_add_u32 s52, s52, {WS_QP}\nv_lshlrev_b32 v7, 4, v1\nv_add_u32 v7, s52, v7")
    poll(g, o, "qpoll", 2, ld4(g, 64, lambda t: (7, t * 1024)), lambda t: range(64+4*t, 68+4*t), sum4(g, 8, 64), o.qsleep, o.qsleep2, "0xf", "s56")
    g.stamp(4)
    g.xswap(32, "v_add_f32", [8, 9, 10, 11], [12, 13, 14, 15])
    g(f"v_cvt_pk_bf16_f32 v8, v8, v9\nv_cvt_pk_bf16_f32 v9, v10, v11\nv_and_b32 v10, 31, v1\nv_lshlrev_b32 v10, 3, v10\nds_write_b64 v10, v[8:9] offset:{L_QF}\ns_waitcnt lgkmcnt(0)")
    g("s_barrier")
    g.stamp(5)
    if o.dbg_notail:
        g("s_barrier")
        g.stamp(11)
        g("s_branch L_fin")
    def sect(name):
        if name in o.dbg_skip: g(f"s_branch L_skip_{name}")
    def endsect(name):
        if name in o.dbg_skip: g(f"L_skip_{name}:")
    sect("wo")
    g("s_mov_b32 s48, s12\ns_and_b32 s49, s13, 0xffff\ns_mov_b32 s50, 0x400000\ns_mov_b32 s51, 0x20000")
    g("s_lshl_b32 s52, s28, 17\ns_lshl_b32 s53, s29, 7\ns_add_u32 s52, s52, s53")
    g("v_lshrrev_b32 v4, 3, v1\nv_lshlrev_b32 v4, 10, v4\nv_and_b32 v6, 7, v1\nv_lshlrev_b32 v6, 4, v6\nv_add_u32 v4, v4, v6\nv_add_u32 v4, s52, v4")
    dma_tile(g, o, 16, 4, "s[48:51]", lambda t: L_IMG + t * 1024, lambda t: t * 8 * 1024, o.Rt)
    tr_tile128(g, 5, 128)
    g("s_waitcnt lgkmcnt(0)")
    endsect("wo")
    g.stamp(6)
    sect("g1")
    l1 = g.lab("nog1")
    g(f"s_cmp_lt_u32 s2, 224\ns_cbranch_scc0 {l1}")
    g("s_and_b32 s52, s2, 15\ns_mul_i32 s52, s52, 32*3584\ns_lshr_b32 s53, s2, 4\ns_lshl_b32 s53, s53, 8\ns_add_u32 s52, s52, s53")
    g("v_lshrrev_b32 v4, 4, v1\nv_mul_u32_u24 v4, 3584, v4\nv_and_b32 v6, 15, v1\nv_lshlrev_b32 v6, 4, v6\nv_add_u32 v4, v4, v6\nv_add_u32 v4, s52, v4")
    for m, (lo, hi) in enumerate((("s16", "s17"), ("s18", "s19"))):
        g(f"s_mov_b32 s48, {lo}\ns_and_b32 s49, {hi}, 0xffff\ns_mov_b32 s50, {512*3584}\ns_mov_b32 s51, 0x20000")
        for t in range(8):
            if t >= o.Rt or m > 0: g(f"s_waitcnt vmcnt({o.Rt-1})")
            g(f"s_mov_b32 m0, {L_IMG + m*8192 + t*1024}\ns_mov_b32 s54, {t*4*3584}")
            g("buffer_load_dwordx4 v4, s[48:51], s54 offen nt lds")
    g("s_waitcnt vmcnt(0)")
    g(f"v_lshrrev_b32 v6, 4, v1\nv_lshlrev_b32 v6, 3, v6\nv_bfe_u32 v7, v1, 2, 2\nv_add_u32 v6, v6, v7\nv_lshlrev_b32 v6, 8, v6\nv_and_b32 v7, 3, v1\nv_lshlrev_b32 v7, 3, v7\nv_add_u32 v6, v6, v7\nv_add_u32 v6, {L_IMG}, v6")
    for m in range(2):
        for u in range(8):
            r = 192 + (m * 8 + u) * 4
            g(f"ds_read_b64_tr_b16 v[{r}:{r+1}], v6 offset:{m*8192 + u*32}\nds_read_b64_tr_b16 v[{r+2}:{r+3}], v6 offset:{m*8192 + u*32 + 1024}")
            if u % 4 == 3: g("s_waitcnt lgkmcnt(0)")
    g("s_and_b32 s52, s2, 15\ns_lshl_b32 s52, s52, 6\nv_bfe_u32 v8, v1, 3, 1\nv_lshlrev_b32 v8, 10, v8\nv_and_b32 v9, 7, v1\nv_lshlrev_b32 v9, 3, v9\nv_add_u32 v8, v8, v9\nv_lshrrev_b32 v9, 4, v1\nv_lshlrev_b32 v9, 1, v9\nv_add_u32 v8, v8, v9\nv_add_u32 v8, s52, v8\nglobal_load_ushort v52, v8, s[4:5]")
    g("s_lshr_b32 s52, s2, 4\ns_lshl_b32 s52, s52, 4\ns_and_b32 s53, s2, 15\ns_add_u32 s52, s52, s53\ns_lshl_b32 s55, s52, 11")
    g("v_and_b32 v60, 15, v1\nv_lshlrev_b32 v60, 6, v60\nv_lshrrev_b32 v8, 4, v1\nv_lshlrev_b32 v8, 4, v8\nv_add_u32 v60, v60, v8\nv_add_u32 v60, s55, v60")
    g(f"v_mov_b32 v8, 0x3f803f80\nv_mov_b32 v9, 0\nv_lshlrev_b32 v10, 2, v1\nv_cmp_gt_u32 vcc, 32, v1\ns_nop 1\nv_cndmask_b32 v8, v9, v8, vcc\ns_mov_b32 exec_hi, 0xffff\nds_write_b32 v10, v8 offset:{L_H32}\ns_mov_b64 exec, -1")
    g1_addrs(g)
    g("s_waitcnt lgkmcnt(0) vmcnt(0)\nv_lshlrev_b32 v52, 16, v52")
    for u in range(8): g(f"ds_read_b128 v[{64+4*u}:{67+4*u}], v{24+u} offset:{L_H32}")
    for r in range(8, 16): g(f"v_mov_b32 v{r}, 0")
    for u in range(8):
        g(f"s_waitcnt lgkmcnt({7-u})")
        g(f"v_mfma_f32_16x16x32_bf16 v[8:11], v[{192+4*u}:{195+4*u}], v[{64+4*u}:{67+4*u}], v[8:11]")
        g(f"v_mfma_f32_16x16x32_bf16 v[12:15], v[{224+4*u}:{227+4*u}], v[{64+4*u}:{67+4*u}], v[12:15]")
    g(f"v_add_u32 v16, {WS_CS}, v60")
    g.nop(7)
    tag1(g, 8); tag1(g, 12)
    g("global_store_dwordx4 v16, v[8:11], s[26:27] sc1\nglobal_store_dwordx4 v16, v[12:15], s[26:27] offset:1024 sc1")
    g(f"{l1}:")
    endsect("g1")
    sect("wd")
    l1 = g.lab("nowd")
    g(f"s_cmp_ge_u32 s2, 144\ns_cbranch_scc0 {l1}")
    g(f"s_mov_b32 s48, s20\ns_and_b32 s49, s21, 0xffff\ns_mov_b32 s50, {1792*1024}\ns_mov_b32 s51, 0x20000")
    g("s_sub_u32 s52, s2, 144\ns_lshl_b32 s52, s52, 14\nv_lshrrev_b32 v4, 4, v1\nv_lshlrev_b32 v4, 10, v4\nv_and_b32 v6, 15, v1\nv_lshlrev_b32 v6, 4, v6\nv_add_u32 v4, v4, v6\nv_add_u32 v4, s52, v4")
    dma_tile(g, o, 16, 4, "s[48:51]", lambda i: L_WD + i * 1024, lambda i: (i // 4) * 4096 + (i % 4) * 256, o.Rt)
    g(f"{l1}:")
    endsect("wd")
    g("s_waitcnt vmcnt(0) lgkmcnt(0)")
    g.stamp(7)
    sect("ml")
    l = g.lab("mlw")
    g(f"v_and_b32 v8, 3, v1\nv_lshlrev_b32 v9, 3, v8\ns_mov_b32 s60, 0\n{l}:\nds_read_b64 v[10:11], v9 offset:{L_MLW}\ns_waitcnt lgkmcnt(0)\nv_cmp_u_f32 vcc, v10, v11")
    g.spin_check("s60", o.spin * 20)
    g(f"s_cbranch_vccz {l}_ok\ns_sleep {o.mlsleep}\ns_branch {l}\n{l}_ok:")
    g.stamp(8)
    def quad(op, r):
        g.nop(2); g(f"{op}_dpp v{r}, v{r}, v{r} quad_perm:[1,0,3,2] row_mask:0xf bank_mask:0xf")
        g.nop(2); g(f"{op}_dpp v{r}, v{r}, v{r} quad_perm:[2,3,0,1] row_mask:0xf bank_mask:0xf")
    g("v_mov_b32 v12, v10"); quad("v_max_f32", 12)
    g(f"v_sub_f32 v13, v10, v12\nv_mul_f32 v13, {hex(LOG2E)}, v13\nv_exp_f32 v13, v13"); g.nop(1)
    g("v_mul_f32 v13, v13, v11"); quad("v_add_f32", 13)
    g(f"s_lshl_b32 s52, s30, 5\ns_add_u32 s52, s52, s28\ns_lshl_b32 s52, s52, 7\ns_add_u32 s52, s52, {WS_ML}")
    g("s_lshl_b32 s53, s31, 4\ns_add_u32 s53, s53, s52\nv_mov_b32 v14, s58\nv_mov_b32 v15, s58\nv_mov_b32 v20, s53\ns_mov_b64 exec, 1\nglobal_store_dwordx4 v20, v[12:15], s[26:27] sc1\ns_mov_b64 exec, -1")
    l = g.lab("mlg")
    g(f"v_lshlrev_b32 v21, 4, v8\nv_add_u32 v21, s52, v21\ns_mov_b32 s60, 0\n{l}:\nglobal_load_dwordx4 v[16:19], v21, s[26:27] sc1\ns_waitcnt vmcnt(0)\nv_cmp_ne_u32 vcc, s58, v18\nv_cmp_ne_u32 s[56:57], s58, v19")
    g.spin_check("s60", o.spin)
    g(f"s_or_b64 vcc, vcc, s[56:57]\ns_cbranch_vccz {l}_ok\ns_sleep {o.mlsleep2}\ns_branch {l}\n{l}_ok:")
    g("v_mov_b32 v18, v16"); quad("v_max_f32", 18)
    g(f"v_sub_f32 v19, v16, v18\nv_mul_f32 v19, {hex(LOG2E)}, v19\nv_exp_f32 v19, v19"); g.nop(1)
    g("v_mul_f32 v19, v19, v17"); quad("v_add_f32", 19)
    g(f"v_rcp_f32 v19, v19\nv_sub_f32 v10, v10, v18\nv_mul_f32 v10, {hex(LOG2E)}, v10\nv_exp_f32 v10, v10"); g.nop(1)
    g(f"v_mul_f32 v10, v10, v19\nv_lshlrev_b32 v9, 2, v8\ns_mov_b64 exec, 0xf\nds_write_b32 v9, v10 offset:{L_FW}\ns_mov_b64 exec, -1")
    endsect("ml")
    g.stamp(9)
    l1 = g.lab("nocs")
    if "cs" in o.dbg_skip: g(f"s_branch {l1}")
    g(f"s_cmp_ge_u32 s2, 144\ns_cbranch_scc0 {l1}")
    g("s_sub_u32 s52, s2, 144\ns_lshr_b32 s53, s52, 3\ns_lshl_b32 s53, s53, 15\ns_and_b32 s52, s52, 7\ns_lshl_b32 s52, s52, 7\ns_add_u32 s52, s52, s53")
    g("v_lshrrev_b32 v56, 4, v1\nv_lshlrev_b32 v56, 11, v56\nv_bfe_u32 v8, v1, 3, 1\nv_lshlrev_b32 v8, 10, v8\nv_add_u32 v56, v56, v8\nv_and_b32 v8, 7, v1\nv_lshlrev_b32 v8, 4, v8\nv_add_u32 v56, v56, v8\nv_add_u32 v56, s52, v56")
    g(f"v_add_u32 v56, {WS_CS}, v56\nv_add_u32 v57, 8192, v56\nv_add_u32 v58, 16384, v56\nv_add_u32 v59, 24576, v56")
    poll(g, o, "cspoll", 4, ld4(g, 64, lambda t: (56 + t, 0)), lambda t: [64+4*t], sum4(g, 48, 64), 0, 32)
    red4(g, 48)
    for t in range(4): g(f"v_add_u32 v{56+t}, {(WS_GP - WS_CS) & 0xffffffff}, v{56+t}")
    g(f"s_sub_u32 s52, s2, 144\ns_lshr_b32 s52, s52, 3\ns_lshl_b32 s52, s52, 8\ns_add_u32 s52, s52, {WS_ST}\nv_and_b32 v61, 15, v1\nv_lshlrev_b32 v61, 4, v61\nv_lshrrev_b32 v8, 4, v1\nv_lshlrev_b32 v8, 2, v8\nv_add_u32 v61, v61, v8\nv_add_u32 v61, s52, v61")
    g(f"{l1}:")
    if o.pretouch:
        def touch(va, offs, i0=0):
            for i, off in enumerate(offs):
                if i + i0 >= 4: g("s_waitcnt vmcnt(3)")
                g(f"global_load_dwordx4 v[{64+4*((i+i0)%8)}:{67+4*((i+i0)%8)}], v{va}, s[26:27] offset:{off} sc1")
        g(f"s_lshl_b32 s52, s28, 12\ns_add_u32 s52, s52, {WS_O}\nv_lshlrev_b32 v8, 4, v1\nv_add_u32 v8, s52, v8")
        touch(8, [0, 1024, 2048, 3072])
        l1 = g.lab("nty")
        g(f"s_cmp_lt_u32 s2, 224\ns_cbranch_scc0 {l1}")
        g(f"s_and_b32 s52, s2, 15\ns_lshl_b32 s52, s52, 13\ns_add_u32 s52, s52, {WS_Y2}\nv_lshlrev_b32 v8, 4, v1\nv_add_u32 v8, s52, v8\nv_add_u32 v9, 4096, v8")
        touch(8, [0, 1024, 2048, 3072], 4); touch(9, [0, 1024, 2048, 3072], 4)
        g(f"{l1}:")
        l1 = g.lab("ntg")
        g(f"s_cmp_ge_u32 s2, 144\ns_cbranch_scc0 {l1}")
        for t in range(4): touch(56 + t, [0], 4)
        g("global_load_dword v96, v61, s[26:27] sc1")
        g(f"{l1}:")
        l1 = g.lab("ntf")
        g(f"s_cmp_lt_u32 s2, 64\ns_cbranch_scc0 {l1}")
        g("s_lshr_b32 s52, s2, 5\ns_lshl_b32 s52, s52, 5\ns_and_b32 s53, s2, 15\ns_lshl_b32 s53, s53, 1\ns_add_u32 s52, s52, s53\ns_bfe_u32 s53, s2, 0x10004\ns_add_u32 s52, s52, s53")
        g(f"s_mul_i32 s53, s52, 7168\ns_add_u32 s53, s53, {WS_DP}\nv_lshlrev_b32 v8, 4, v1\nv_add_u32 v8, s53, v8\nv_add_u32 v9, 4096, v8")
        touch(8, [0, 1024, 2048, 3072], 4); touch(9, [0, 1024, 2048], 4)
        g(f"{l1}:")
        g("s_waitcnt vmcnt(0)")
    g("v_and_b32 v2, 31, v1\nv_lshlrev_b32 v2, 4, v2")
    g(f"s_lshl_b32 s52, s28, 12\ns_add_u32 s52, s52, {WS_O}\nv_lshlrev_b32 v3, 4, v1\nv_add_u32 v3, s52, v3")
    g("v_lshlrev_b32 v4, 3, v1")
    g("v_and_b32 v6, 1, v1\nv_lshlrev_b32 v6, 8, v6\nv_lshrrev_b32 v7, 4, v1\nv_lshlrev_b32 v7, 4, v7\nv_add_u32 v6, v6, v7")
    g(f"s_lshl_b32 s52, s28, 3\ns_lshl_b32 s53, s30, 2\ns_add_u32 s52, s52, s53\ns_add_u32 s52, s52, s31\ns_lshl_b32 s52, s52, 9\ns_add_u32 s52, s52, {WS_O}")
    g("v_and_b32 v62, 31, v1\nv_lshlrev_b32 v62, 4, v62\nv_add_u32 v62, s52, v62")
    g(f"s_lshl_b32 s52, s29, 14\ns_lshl_b32 s53, s28, 8\ns_add_u32 s52, s52, s53\ns_add_u32 s52, s52, {WS_Y2}")
    g("v_and_b32 v63, 1, v1\nv_lshlrev_b32 v63, 7, v63\nv_lshrrev_b32 v8, 4, v1\nv_lshlrev_b32 v8, 4, v8\nv_add_u32 v63, v63, v8\nv_add_u32 v63, s52, v63")
    g("v_add_u32 v5, 8192, v63")
    for i in range(16): g(f"v_mov_b32 v{24+i}, 0")
    sect("hint")
    l = g.lab("hint")
    g(f"v_mov_b32 v8, 0\ns_mov_b32 s60, 0\n{l}:\nds_read_b32 v9, v8 offset:{L_HINT}\ns_waitcnt lgkmcnt(0)\nv_cmp_eq_u32 vcc, 0, v9")
    g.spin_check("s60", o.spin * 20)
    g(f"s_cbranch_vccz {l}_ok\ns_sleep {o.hintsleep}\ns_branch {l}\n{l}_ok:")
    g(f"s_lshl_b32 s52, s28, 7\ns_lshl_b32 s53, s29, 2\ns_add_u32 s52, s52, s53\ns_add_u32 s52, s52, {WS_HF}\nv_mov_b32 v8, s52\nv_mov_b32 v9, s58\ns_mov_b64 exec, 1\nglobal_store_dword v8, v9, s[26:27] sc1\ns_mov_b64 exec, -1")
    l1 = g.lab("norep")
    g(f"s_cmp_lt_u32 s2, 8\ns_cbranch_scc0 {l1}")
    g(f"s_lshl_b32 s52, s2, 2\ns_add_u32 s52, s52, {WS_RF}\nv_lshlrev_b32 v8, 7, v1\nv_add_u32 v8, s52, v8\ns_mov_b64 exec, 0xffff\nglobal_store_dword v8, v9, s[26:27] sc1\ns_mov_b64 exec, -1")
    g(f"{l1}:")
    endsect("hint")
    g.stamp(10)
    if o.agate:
        g(f"s_lshl_b32 s52, s28, 7\ns_add_u32 s52, s52, {WS_HF}")
        gate(g, o, "agate", o.gsleep)
    g("s_barrier")
    g.stamp(11)
    if o.dbg_endb3: g("s_branch L_fin")
    for w in range(4): g(f"ds_read_b128 v[{8+4*w}:{11+4*w}], v2 offset:{L_OACC + w*512}")
    g("s_waitcnt lgkmcnt(2)\nv_pk_add_f32 v[8:9], v[8:9], v[12:13]\nv_pk_add_f32 v[10:11], v[10:11], v[14:15]")
    g("s_waitcnt lgkmcnt(0)\nv_pk_add_f32 v[16:17], v[16:17], v[20:21]\nv_pk_add_f32 v[18:19], v[18:19], v[22:23]")
    g("v_pk_add_f32 v[8:9], v[8:9], v[16:17]\nv_pk_add_f32 v[10:11], v[10:11], v[18:19]")
    tag1(g, 8)
    g("s_mov_b32 exec_hi, 0\nglobal_store_dwordx4 v62, v[8:11], s[26:27] sc1\ns_mov_b32 exec_hi, -1")
    def acc_o(t):
        if t == 1: g("v_pk_add_f32 v[40:41], v[64:65], v[68:69]\nv_pk_add_f32 v[42:43], v[66:67], v[70:71]")
        if t == 3: g("v_pk_add_f32 v[16:17], v[72:73], v[76:77]\nv_pk_add_f32 v[18:19], v[74:75], v[78:79]")
    poll(g, o, "opoll", 4, ld4(g, 64, lambda t: (3, t * 1024)), lambda t: [64+4*t], acc_o, o.opre, o.oretry)
    g.stamp(12)
    for r in range(4): g(f"v_permlane32_swap_b32 v{40+r}, v{16+r}")
    g.nop(1)
    g("v_pk_add_f32 v[40:41], v[40:41], v[16:17]\nv_pk_add_f32 v[42:43], v[42:43], v[18:19]")
    g("v_cvt_pk_bf16_f32 v8, v40, v41\nv_cvt_pk_bf16_f32 v9, v42, v43")
    g(f"ds_write_b64 v4, v[8:9] offset:{L_OB}\ns_waitcnt lgkmcnt(0)")
    for kb in range(4): g(f"ds_read_b128 v[{8+4*kb}:{11+4*kb}], v6 offset:{L_OB + kb*64}")
    for kb in range(4):
        g(f"s_waitcnt lgkmcnt({3-kb})")
        for cb in range(4):
            r = 128 + (cb * 4 + kb) * 4
            g(f"v_mfma_f32_16x16x32_bf16 v[{24+4*cb}:{27+4*cb}], v[{r}:{r+3}], v[{8+4*kb}:{11+4*kb}], v[{24+4*cb}:{27+4*cb}]")
    g("s_mov_b32 exec_lo, 0x00030003\ns_mov_b32 exec_hi, 0x00030003")
    g.nop(3)
    for cb in range(4):
        if cb == 2: g.nop(2)
        if cb == 3: g.nop(1)
        tag1(g, 24+4*cb)
        g(f"global_store_dwordx4 v{63 if cb < 2 else 5}, v[{24+4*cb}:{27+4*cb}], s[26:27] offset:{(cb&1)*64} sc1")
    g("s_mov_b64 exec, -1")
    g.stamp(13)
    g("s_cmp_lt_u32 s2, 224\ns_cbranch_scc0 L_g2pre")
    g(f"s_and_b32 s52, s2, 15\ns_lshl_b32 s52, s52, 13\ns_add_u32 s52, s52, {WS_Y2}\nv_lshlrev_b32 v3, 4, v1\nv_add_u32 v3, s52, v3\nv_add_u32 v4, 4096, v3")
    g("v_bfe_u32 v6, v1, 3, 1\nv_lshlrev_b32 v6, 6, v6\nv_and_b32 v7, 7, v1\nv_lshlrev_b32 v7, 3, v7\nv_add_u32 v6, v6, v7\nv_lshrrev_b32 v7, 4, v1\nv_lshlrev_b32 v7, 1, v7\nv_add_u32 v6, v6, v7")
    g("v_bfe_u32 v8, v1, 3, 1\nv_mov_b32 v55, s62\nv_mov_b32 v9, s63\nv_cmp_eq_u32 vcc, 1, v8\ns_nop 1\nv_cndmask_b32 v55, v55, v9, vcc")
    g1_addrs(g)
    g(f"v_add_u32 v5, {WS_GP}, v60")
    g(f"s_lshr_b32 s52, s55, 7\ns_add_u32 s52, s52, {WS_ST}\nv_bfe_u32 v7, v1, 3, 1\nv_lshlrev_b32 v7, 3, v7\nv_bfe_u32 v8, v1, 4, 1\nv_lshlrev_b32 v8, 2, v8\nv_add_u32 v7, v7, v8\nv_add_u32 v7, s52, v7")
    for r in range(8): g(f"v_mov_b32 v{32+r}, 0")
    if o.ggate:
        g(f"s_and_b32 s52, s2, 15\ns_lshl_b32 s52, s52, 7\ns_add_u32 s52, s52, {WS_RF}")
        gate(g, o, "ggate", o.gsleep)
    poll(g, o, "ypoll", 8, ld4(g, 64, lambda t: (3 if t < 4 else 4, (t % 4) * 1024)), lambda t: [64+4*t], sum4(g, 8, 64), o.ypre, o.yretry)
    g.stamp(14)
    red4(g, 8)
    g("v_cvt_pk_bf16_f32 v9, v8, v8\nv_lshlrev_b32 v9, 16, v9\nv_add_f32 v9, v9, v52\nv_cvt_pk_bf16_f32 v9, v9, v9")
    g(f"ds_write_b16 v6, v9 offset:{L_H32}\nv_lshlrev_b32 v14, 16, v9\nv_sub_f32 v14, v14, v55\nv_mul_f32 v15, v14, v14\ns_waitcnt lgkmcnt(0)")
    for u in range(8): g(f"ds_read_b128 v[{128+4*u}:{131+4*u}], v{24+u} offset:{L_H32}")
    for u in range(8):
        g(f"s_waitcnt lgkmcnt({7-u})")
        g(f"v_mfma_f32_16x16x32_bf16 v[32:35], v[{192+4*u}:{195+4*u}], v[{128+4*u}:{131+4*u}], v[32:35]")
        g(f"v_mfma_f32_16x16x32_bf16 v[36:39], v[{224+4*u}:{227+4*u}], v[{128+4*u}:{131+4*u}], v[36:39]")
        if u < 3:
            pat = ("quad_perm:[1,0,3,2]", "quad_perm:[2,3,0,1]", "row_half_mirror")[u]
            for r in (14, 15): g(f"v_add_f32_dpp v{r}, v{r}, v{r} {pat} row_mask:0xf bank_mask:0xf")
        if u == 3: g("v_permlane16_swap_b32 v14, v15")
        if u == 4: g("v_add_f32 v14, v14, v15")
        if u == 5: g("v_mov_b32 v15, v14")
        if u == 6: g("v_permlane32_swap_b32 v14, v15")
        if u == 7: g("v_add_f32 v14, v14, v15")
    g.nop(6)
    tag1(g, 32)
    g("global_store_dwordx4 v5, v[32:35], s[26:27] sc1")
    tag1(g, 36)
    g("global_store_dwordx4 v5, v[36:39], s[26:27] offset:1024 sc1")
    tag1(g, 14)
    g("s_mov_b32 exec_lo, 0x01010101\ns_mov_b32 exec_hi, 0\nglobal_store_dword v7, v14, s[26:27] sc1\ns_mov_b64 exec, -1")
    g.stamp(15)
    g("s_cmp_lt_u32 s2, 64\ns_cbranch_scc1 L_f")
    g("s_cmp_ge_u32 s2, 144\ns_cbranch_scc0 L_fin")
    g("s_branch L_g2")
    g("L_g2pre:")
    if o.g2sleep: g(f"s_sleep {o.g2sleep}")
    g("L_g2:")
    g("v_lshlrev_b32 v2, 4, v1")
    for i in range(16):
        g(f"ds_read_b128 v[{128+4*i}:{131+4*i}], v2 offset:{L_WD + i*1024}")
        if i == 7: g("s_waitcnt lgkmcnt(0)")
    g.masks(4, 8, True)
    g(f"s_sub_u32 s52, s2, 144\ns_lshl_b32 s52, s52, 6\ns_add_u32 s52, s52, {WS_DP}")
    g("v_lshrrev_b32 v62, 5, v1\nv_lshlrev_b32 v62, 5, v62\nv_bfe_u32 v8, v1, 1, 3\nv_add_u32 v62, v62, v8\nv_mul_u32_u24 v62, 7168, v62\nv_and_b32 v8, 1, v1\nv_lshlrev_b32 v8, 5, v8\nv_add_u32 v62, v62, v8\nv_bfe_u32 v8, v1, 4, 1\nv_lshlrev_b32 v8, 4, v8\nv_add_u32 v62, v62, v8\nv_add_u32 v62, s52, v62")
    g(f"v_add_u32 v49, {8*7168}, v62\nv_add_u32 v50, {16*7168}, v62\nv_add_u32 v51, {24*7168}, v62")
    g("v_bfe_u32 v63, v1, 2, 1\nv_lshlrev_b32 v63, 6, v63\nv_and_b32 v8, 3, v1\nv_lshlrev_b32 v8, 4, v8\nv_add_u32 v63, v63, v8\nv_lshrrev_b32 v8, 4, v1\nv_lshlrev_b32 v8, 2, v8\nv_add_u32 v63, v63, v8")
    g("v_bfe_u32 v3, v1, 3, 1\nv_lshlrev_b32 v3, 6, v3\nv_lshrrev_b32 v8, 4, v1\nv_lshlrev_b32 v8, 2, v8\nv_add_u32 v3, v3, v8")
    g("v_bfe_u32 v8, v1, 2, 1\nv_cmp_eq_u32 s[56:57], 1, v8\nv_mov_b32 v55, s62\nv_mov_b32 v9, s63\ns_nop 1\nv_cndmask_b32 v55, v55, v9, s[56:57]")
    for i in range(16): g(f"v_mov_b32 v{24+i}, 0")
    g("s_waitcnt lgkmcnt(0)")
    def ld_g(t):
        if t < 4: ld4(g, 64, lambda tt: (56 + tt, 0))(t)
        else: g("global_load_dword v12, v61, s[26:27] sc1")
    def acc_g(t):
        if t < 4: sum4(g, 8, 64)(t)
    poll(g, o, "gpoll", 5, ld_g, lambda t: [64+4*t] if t < 4 else [12], acc_g, o.gpre, o.gretry)
    g.stamp(16)
    g("v_add_f32_dpp v12, v12, v12 row_ror:8 row_mask:0xf bank_mask:0xf")
    g("v_permlane16_swap_b32 v8, v9\nv_permlane16_swap_b32 v10, v11")
    g("v_add_f32_dpp v12, v12, v12 row_ror:4 row_mask:0xf bank_mask:0xf")
    g("v_add_f32 v8, v8, v9\nv_add_f32 v10, v10, v11")
    g("v_add_f32_dpp v12, v12, v12 row_ror:2 row_mask:0xf bank_mask:0xf")
    g.nop(1)
    g("v_permlane32_swap_b32 v8, v10")
    g("v_add_f32_dpp v12, v12, v12 row_ror:1 row_mask:0xf bank_mask:0xf")
    g("v_add_f32 v8, v8, v10")
    g("v_readlane_b32 s66, v12, 0\nv_readlane_b32 s67, v12, 16\nv_readlane_b32 s68, v12, 32\nv_readlane_b32 s69, v12, 48")
    g.nop(1)
    g("v_mov_b32 v12, s66\nv_mov_b32 v13, s67\nv_mov_b32 v14, s68\nv_mov_b32 v15, s69\nv_cndmask_b32 v12, v12, v14, s[56:57]\nv_cndmask_b32 v13, v13, v15, s[56:57]")
    g("v_mul_f32 v12, 0x3b000000, v12\nv_mul_f32 v13, 0x3b000000, v13\nv_fma_f32 v13, -v12, v12, v13\nv_add_f32 v12, v12, v55\nv_add_f32 v13, 0x3727c5ac, v13\nv_rsq_f32 v13, v13")
    g("v_fma_f32 v8, -v12, v48, v8\nv_mul_f32 v8, v8, v13\nv_cvt_pk_bf16_f32 v8, v8, v8\nv_lshlrev_b32 v8, 16, v8")
    g("v_mul_f32 v9, 0xbfb8aa3b, v8\nv_exp_f32 v9, v9\nv_mov_b32_dpp v10, v8 row_ror:8 row_mask:0xf bank_mask:0xf\nv_add_f32 v9, 1.0, v9\nv_rcp_f32 v9, v9\ns_nop 0")
    g("v_mul_f32 v9, v8, v9\nv_cvt_pk_bf16_f32 v9, v9, v9\nv_lshlrev_b32 v9, 16, v9\nv_mul_f32 v9, v9, v10\nv_cvt_pk_bf16_f32 v9, v9, v9")
    g(f"s_mov_b32 exec_lo, 0x00ff00ff\ns_mov_b32 exec_hi, 0x00ff00ff\nds_write_b32 v63, v9 offset:{L_ACT}\ns_mov_b64 exec, -1\ns_waitcnt lgkmcnt(0)")
    for t in range(4): g(f"ds_read_b32 v{8+t}, v3 offset:{L_ACT + t*16}")
    for t in range(4):
        g(f"s_waitcnt lgkmcnt({3-t})")
        A = 40 if (t & 1) == 0 else 12
        for r in range(4): g(f"v_and_b32 v{A+r}, v{8+t}, v{4+r}")
        g.nop(2)
        for cb4 in range(4):
            rb = 128 + (t * 4 + cb4) * 4
            g(f"v_mfma_f32_16x16x32_bf16 v[{24+4*cb4}:{27+4*cb4}], v[{A}:{A+3}], v[{rb}:{rb+3}], v[{24+4*cb4}:{27+4*cb4}]")
    g.nop(5)
    for cb4 in range(4):
        if cb4 == 2: g.nop(1)
        if cb4 == 3: g.nop(2)
        tag1(g, 24+4*cb4)
        g(f"global_store_dwordx4 v{(62, 49, 50, 51)[cb4]}, v[{24+4*cb4}:{27+4*cb4}], s[26:27] sc1")
    g.stamp(17)
    g("s_branch L_fin")
    g("L_f:")
    g("s_lshr_b32 s52, s2, 5\ns_lshl_b32 s52, s52, 5\ns_and_b32 s53, s2, 15\ns_lshl_b32 s53, s53, 1\ns_add_u32 s52, s52, s53\ns_bfe_u32 s53, s2, 0x10004\ns_add_u32 s52, s52, s53")
    g(f"s_mul_i32 s53, s52, 7168\ns_add_u32 s53, s53, {WS_DP}\nv_lshlrev_b32 v3, 4, v1\nv_add_u32 v3, s53, v3\nv_add_u32 v4, 4096, v3")
    g("s_lshr_b32 s53, s2, 5\ns_lshl_b32 s53, s53, 6\ns_bfe_u32 s54, s2, 0x10004\ns_lshl_b32 s54, s54, 5\ns_add_u32 s53, s53, s54")
    g(f"v_and_b32 v6, 3, v1\nv_lshlrev_b32 v6, 3, v6\nv_lshrrev_b32 v7, 4, v1\nv_lshlrev_b32 v7, 1, v7\nv_add_u32 v6, v6, v7\nv_add_u32 v7, s53, v6\nds_read_u16 v20, v7 offset:{L_H32}")
    g("s_lshl_b32 s53, s52, 5\nv_add_u32 v6, s53, v6")
    g("s_waitcnt lgkmcnt(0)\nv_lshlrev_b32 v20, 16, v20")
    poll(g, o, "fpoll", 7, ld4(g, 64, lambda t: (3 if t < 4 else 4, (t % 4) * 1024)), lambda t: [64+4*t], sum4(g, 8, 64), o.fsleep, o.fretry)
    g.stamp(18)
    red4(g, 8)
    g.nop(2)
    g("v_add_f32_dpp v8, v8, v8 row_ror:4 row_mask:0xf bank_mask:0xf")
    g.nop(2)
    g("v_add_f32_dpp v8, v8, v8 row_ror:8 row_mask:0xf bank_mask:0xf")
    g("v_cvt_pk_bf16_f32 v8, v8, v8\nv_lshlrev_b32 v8, 16, v8\nv_add_f32 v8, v8, v20\nv_cvt_pk_bf16_f32 v8, v8, v8")
    g("s_mov_b32 exec_lo, 0x000f000f\ns_mov_b32 exec_hi, 0x000f000f\nglobal_store_short v6, v8, s[22:23]\ns_mov_b64 exec, -1")
    l1 = g.lab("noep")
    g(f"s_cmp_eq_u32 s2, 0\ns_cbranch_scc0 {l1}\nv_mov_b32 v8, 0\nv_mov_b32 v9, s58\ns_mov_b64 exec, 1\nglobal_store_dword v8, v9, s[26:27] offset:{WS_EPOCH}\ns_mov_b64 exec, -1\n{l1}:")
    g.stamp(19)
    g("L_fin:")
    g.dump_stamps()
    g("L_end:\ns_endpgm")

def gen(o):
    g = G(o)
    g("s_cmp_ge_u32 s2, 256\ns_cbranch_scc1 L_exit")
    g("s_load_dwordx16 s[4:19], s[0:1], 0\ns_load_dwordx8 s[20:27], s[0:1], 64")
    g("v_lshrrev_b32 v1, 6, v0\ns_nop 0\nv_readfirstlane_b32 s3, v1\nv_and_b32 v1, 63, v0")
    g("s_and_b32 s28, s2, 7\ns_lshl_b32 s28, s28, 2\ns_bfe_u32 s29, s2, 0x20003\ns_add_u32 s28, s28, s29")
    g("s_lshr_b32 s29, s2, 5\ns_and_b32 s30, s29, 1\ns_lshr_b32 s31, s29, 1")
    if o.stamps: g("v_mov_b32 v0, 0")
    g("s_waitcnt lgkmcnt(0)")
    g("s_cmp_lt_u32 s3, 4\ns_cbranch_scc0 L_tail")
    schedule_stream(g, o)
    g("L_exit:\ns_endpgm")
    tail(g, o)
    return wrap(g.text(), 256, 320, L_END, vgpr=256, sgpr=102)

def parse(argv=None):
    ap = argparse.ArgumentParser()
    ap.add_argument("-o", default="k6.s")
    ap.add_argument("--R", type=int, default=5)
    ap.add_argument("--Rt", type=int, default=4)
    ap.add_argument("--stamps", type=int, default=0)
    ap.add_argument("--mimic", type=int, default=1)
    ap.add_argument("--spin", type=int, default=100000)
    ap.add_argument("--hint_tile", type=int, default=29)
    ap.add_argument("--gsleep", type=int, default=2)
    ap.add_argument("--fsleep", type=int, default=0)
    ap.add_argument("--dbg_notail", type=int, default=0)
    ap.add_argument("--dbg_nok", type=int, default=0)
    ap.add_argument("--dbg_nov", type=int, default=0)
    ap.add_argument("--dbg_noq", type=int, default=0)
    ap.add_argument("--mlsleep", type=int, default=8)
    ap.add_argument("--mlsleep2", type=int, default=32)
    ap.add_argument("--Rpat", type=str, default="")
    ap.add_argument("--Rv", type=int, default=0)
    ap.add_argument("--cpf0", type=int, default=0)
    ap.add_argument("--Rend", type=int, default=0)
    ap.add_argument("--Rendtile", type=int, default=24)
    ap.add_argument("--pretouch", type=int, default=1)
    ap.add_argument("--tpol", type=str, default="sc1")
    for nm, k, stg in (("q", 1, 0), ("o", 2, 4), ("y", 2, 4), ("g", 2, 4), ("f", 2, 4)):
        ap.add_argument(f"--{nm}k", type=int, default=k)
        ap.add_argument(f"--{nm}stag", type=int, default=stg)
        ap.add_argument(f"--{nm}pre", type=int, default=0)
        ap.add_argument(f"--{nm}retry", type=int, default=0)
    ap.add_argument("--cpf", type=int, default=1)
    ap.add_argument("--dbgtime", type=int, default=0)
    ap.add_argument("--kpol", type=str, default="nt")
    ap.add_argument("--vpol", type=str, default="nt")
    ap.add_argument("--tagbits", type=int, default=4)
    ap.add_argument("--qsleep", type=int, default=16)
    ap.add_argument("--qsleep2", type=int, default=4)
    ap.add_argument("--g2sleep", type=int, default=16)
    ap.add_argument("--agate", type=int, default=1)
    ap.add_argument("--ggate", type=int, default=1)
    ap.add_argument("--hintsleep", type=int, default=4)
    ap.add_argument("--dbg_skip", type=str, default="")
    ap.add_argument("--dbg_endb3", type=int, default=0)
    return ap.parse_args(argv)
if __name__ == "__main__":
    o = parse()
    open(o.o, "w").write(gen(o))
    print("wrote", o.o)
```
